```python
import torch

def _softmax(x, axis=-1):
    return torch.softmax(x, dim=axis)
def _gelu(x):
    return torch.nn.functional.gelu(x, approximate="tanh")
def _silu(x):
    return torch.nn.functional.silu(x)
def _sigmoid(x):
    return torch.sigmoid(x)
def _layernorm(x, axis=-1, eps=1e-5):
    m = x.mean(dim=axis, keepdim=True)
    v = x.var(dim=axis, keepdim=True, unbiased=False)
    return (x - m) / torch.sqrt(v + eps)
def _scatter_add(tgt, idx, src, axis=0):
    return tgt.clone().index_add_(axis, idx, src)
def _segment_sum(src, seg, n):
    out = torch.zeros((n,) + src.shape[1:], dtype=src.dtype)
    return out.index_add_(0, seg, src)
def _pad(x, pw):
    flat = tuple(v for pair in reversed(pw) for v in pair)
    return torch.nn.functional.pad(x, flat)

kernel_name = 'gated_mix__linear_attn_block__linear_kernel_hedgehog__prompt'

def setup_inputs():

    _w = (lambda a: (lambda t: t.to(torch.bfloat16) if t.is_floating_point() else t)(torch.as_tensor(a)))
    def _A_setup():
        B, S, D = 1, 2048, 576
        return {
            "x": _w((lambda *s: torch.randn(*s, dtype=torch.bfloat16) * 0.05)(B, S, D)),
            "wqkv": _w((lambda *s: torch.randn(*s, dtype=torch.bfloat16) * 1.6)(D, 3 * D)),
            "wo": _w((lambda *s: torch.randn(*s, dtype=torch.bfloat16) * 0.1)(D, D)),
        }
    _A_in = _A_setup()

    def _B_setup():
        B, S, D, H = 1, 2048, 576, 32
        Dh = D // H
        return {
            "x": _w((lambda *s: torch.randn(*s, dtype=torch.bfloat16) * 0.05)(B, S, D)),
            "wqkv": _w((lambda *s: torch.randn(*s, dtype=torch.bfloat16) * 1.6)(D, 3 * D)),
            "w_phi": _w((lambda *s: torch.randn(*s, dtype=torch.bfloat16) * 1.6)(H, Dh, Dh) * (Dh ** -0.5)),
            "wo": _w((lambda *s: torch.randn(*s, dtype=torch.bfloat16) * 0.05)(D, D)),
        }
    _B_in = _B_setup()

    return {
        "A_x": _A_in["x"],
        "A_wqkv": _A_in["wqkv"],
        "A_wo": _A_in["wo"],
        "B_x": _B_in["x"],
        "B_wqkv": _B_in["wqkv"],
        "B_w_phi": _B_in["w_phi"],
        "B_wo": _B_in["wo"],
        "gate_w": _w((lambda *s: torch.randn(*s, dtype=torch.bfloat16) * 0.05)(576) * 16.0),
    }

def reference(A_x, A_wqkv, A_wo, B_x, B_wqkv, B_w_phi, B_wo, gate_w):
    def _A_ref(x, wqkv, wo):
        B, S, D = x.shape
        H = 32; Dh = D // H
        qkv = (lambda x, *d: x.permute(*d))((x @ wqkv).reshape(B, S, 3, H, Dh), 2, 0, 3, 1, 4)
        q, k, v = qkv[0], qkv[1], qkv[2]
        phi = lambda t: torch.where(t > 0, t + 1, torch.exp(t)) + 1e-6
        pq, pk = phi(q), phi(k)
        kv = torch.einsum("bhsd,bhse->bhde", pk, v)
        z = torch.einsum("bhsd->bhd", pk)
        num = torch.einsum("bhqd,bhde->bhqe", pq, kv)
        den = torch.einsum("bhqd,bhd->bhq", pq, z)[..., None] + 1e-6
        o = num / den
        return (lambda x, *d: x.permute(*d))(o, 0, 2, 1, 3).reshape(B, S, D) @ wo

    def _B_ref(x, wqkv, w_phi, wo):
        B, S, D = x.shape
        H = 32; Dh = D // H
        qkv = (lambda x, *d: x.permute(*d))((x @ wqkv).reshape(B, S, 3, H, Dh), 2, 0, 3, 1, 4)
        q, k, v = qkv[0], qkv[1], qkv[2]
        pq = torch.einsum("bhsd,hdf->bhsf", q, w_phi)
        pk = torch.einsum("bhsd,hdf->bhsf", k, w_phi)
        phi_q = torch.concatenate([_softmax(pq, axis=-1), _softmax(-pq, axis=-1)], axis=-1)
        phi_k = torch.concatenate([_softmax(pk, axis=-1), _softmax(-pk, axis=-1)], axis=-1)
        kv = torch.einsum("bhsf,bhsd->bhfd", phi_k, v)
        z  = torch.einsum("bhsf->bhf", phi_k)
        num = torch.einsum("bhqf,bhfd->bhqd", phi_q, kv)
        den = torch.einsum("bhqf,bhf->bhq", phi_q, z)[..., None] + 1e-6
        o = num / den
        return (lambda x, *d: x.permute(*d))(o, 0, 2, 1, 3).reshape(B, S, D) @ wo

    x = A_x
    g = _sigmoid((x * gate_w).sum(-1, keepdims=True))
    a = _A_ref(x, A_wqkv, A_wo)
    b = _B_ref(x, B_wqkv, B_w_phi, B_wo)
    return g * a + (1 - g) * b
```

```python
import re

_REG_RE = re.compile(r'^(-|abs\()?\s*([vsa])(\d+)$|^(-|abs\()?\s*([vsa])\[(\d+):(\d+)\]$')

def parse_regs(tok):
    t = tok.strip()
    t = t.replace('|', '')
    if t.startswith('-'):
        t = t[1:]
    if t.startswith('abs(') and t.endswith(')'):
        t = t[4:-1]
    if t in ('vcc', 'exec', 'm0', 'scc'):
        return [(t, 0)]
    if t in ('vcc_lo', 'vcc_hi'):
        return [('vcc', 0)]
    if t in ('exec_lo', 'exec_hi'):
        return [('exec', 0)]
    m = re.match(r'^([vsa])(\d+)$', t)
    if m:
        return [(m.group(1), int(m.group(2)))]
    m = re.match(r'^([vsa])\[(\d+):(\d+)\]$', t)
    if m:
        return [(m.group(1), i) for i in range(int(m.group(2)), int(m.group(3)) + 1)]
    return []

TRANS = ('v_exp_f32', 'v_log_f32', 'v_rcp_f32', 'v_rsq_f32', 'v_sqrt_f32', 'v_sin_f32', 'v_cos_f32',
         'v_rcp_iflag_f32', 'v_exp_f16', 'v_log_f16', 'v_rcp_f16')

def split_ops(s):
    out = []; depth = 0; cur = ''
    for ch in s:
        if ch in '[(':
            depth += 1
        if ch in '])':
            depth -= 1
        if ch == ',' and depth == 0:
            out.append(cur.strip()); cur = ''
        else:
            cur += ch
    if cur.strip():
        out.append(cur.strip())
    return out

RAW_D = {2: 5, 4: 8, 8: 12, 16: 20}
OVL_C = {2: 4, 4: 6, 8: 10, 16: 18}
WAR_C = {2: 1, 4: 3, 8: 7, 16: 15}

class Ins:
    __slots__ = ('op', 'kind', 'reads', 'writes', 'pos', 'passes', 'srcc', 'trans', 'dpp', 'lanesel', 'sdata', 'ldsdma', 'text', 'vsel_const')

class Asm:
    def __init__(self):
        self.lines = []
        self.hist = []
        self.pos = 0
        self.vmq = []
        self.lgq = []
        self.ninstr = 0
        self.npad = 0
        self.stats = {}
    def raw(self, s):
        self.lines.append(s)
    def c(self, s):
        self.lines.append('  ; ' + s)
    def _classify(self, text):
        t = text.split(';')[0].strip()
        sp = t.split(None, 1)
        op = sp[0]
        rest = sp[1] if len(sp) > 1 else ''
        ops_all = split_ops(rest)
        mods = ''
        if ops_all:
            last = ops_all[-1].split()
            ops_all[-1] = last[0]
            mods = ' '.join(last[1:])
        i = Ins()
        i.op = op; i.text = text; i.reads = set(); i.writes = set(); i.passes = 0; i.srcc = None
        i.trans = op.replace('_e32', '').replace('_e64', '') in TRANS
        i.dpp = ('row_' in mods) or ('quad_perm' in mods) or ('wave_' in mods)
        i.lanesel = set(); i.sdata = set(); i.ldsdma = False
        o = ops_all
        R = lambda k: set(parse_regs(o[k])) if k < len(o) else set()
        allr = lambda ks: set().union(*[R(k) for k in ks]) if ks else set()
        n = len(o)
        if op.startswith('v_mfma'):
            i.kind = 'mfma'
            i.writes = R(0); i.reads = allr([1, 2, 3]); i.srcc = R(3)
            if '32x32x16' in op: i.passes = 8
            elif '16x16x32' in op: i.passes = 4
            elif '32x32x8' in op: i.passes = 8
            elif '16x16x16' in op: i.passes = 4
            else: raise ValueError('mfma passes? ' + op)
        elif op.startswith('v_'):
            i.kind = 'valu'
            base = op.replace('_e32', '').replace('_e64', '')
            if base.startswith('v_cmp'):
                i.writes = R(0); i.reads = allr(range(1, n))
            elif base in ('v_permlane32_swap_b32', 'v_permlane16_swap_b32'):
                i.writes = allr([0, 1]); i.reads = allr([0, 1])
            elif base in ('v_add_co_u32', 'v_sub_co_u32', 'v_subrev_co_u32'):
                i.writes = allr([0, 1]); i.reads = allr(range(2, n))
            elif base in ('v_addc_co_u32', 'v_subb_co_u32'):
                i.writes = allr([0, 1]); i.reads = allr(range(2, n))
            elif base.startswith('v_fmac') or base.startswith('v_pk_fmac'):
                i.writes = R(0); i.reads = allr(range(0, n))
            elif base in ('v_readlane_b32',):
                i.writes = R(0); i.reads = allr([1]); i.lanesel = R(2); i.reads |= R(2)
            elif base in ('v_writelane_b32',):
                i.writes = R(0); i.reads = allr([0, 1]); i.lanesel = R(2); i.reads |= R(2)
            else:
                i.writes = R(0); i.reads = allr(range(1, n))
        elif op.startswith('ds_'):
            i.kind = 'ds'
            if op.startswith('ds_read') or op in ('ds_bpermute_b32', 'ds_permute_b32', 'ds_swizzle_b32'):
                i.writes = R(0); i.reads = allr(range(1, n))
            else:
                i.reads = allr(range(0, n))
        elif op.startswith('buffer_') or op.startswith('global_'):
            i.kind = 'vmem'
            if ' lds' in (' ' + mods) and 'load' in op:
                i.ldsdma = True
                i.reads = allr(range(0, n)) | {('m0', 0)}
            elif '_load' in op:
                i.writes = R(0); i.reads = allr(range(1, n))
            elif '_store' in op:
                i.reads = allr(range(0, n))
                if 'x4' in op or 'x3' in op:
                    i.sdata = R(0)
            elif '_atomic' in op:
                if 'sc0' in mods.split():
                    i.writes = R(0)
                i.reads = allr(range(0, n))
            else:
                raise ValueError('vmem? ' + op)
        elif op.startswith('s_load') or op.startswith('s_buffer_load') or op in ('s_memrealtime', 's_memtime'):
            i.kind = 'smem'
            i.writes = R(0); i.reads = allr(range(1, n))
        elif op in ('s_waitcnt', 's_nop', 's_barrier', 's_endpgm', 's_sleep', 's_setprio') or op.startswith('s_cbranch') or op == 's_branch':
            i.kind = 'ctl'
            if op.startswith('s_cbranch_vcc'): i.reads = {('vcc', 0)}
            if op.startswith('s_cbranch_exec'): i.reads = {('exec', 0)}
        elif op.startswith('s_'):
            i.kind = 'salu'
            if op.startswith('s_cmp') or op.startswith('s_bitcmp'):
                i.reads = allr(range(0, n))
            else:
                i.writes = R(0); i.reads = allr(range(1, n))
        else:
            raise ValueError('unknown op ' + op)
        return i
    def _need(self, h, n):
        need = 0
        hv = {r for r in h.writes if r[0] in ('v', 'a')}
        if h.kind == 'valu':
            if n.kind == 'mfma' and (hv & n.reads):
                need = max(need, 2)
            if h.trans and n.kind == 'valu' and not n.trans and (hv & n.reads):
                need = max(need, 1)
            hs = {r for r in h.writes if r[0] in ('s', 'vcc')}
            if hs:
                if n.kind == 'valu' and (hs & n.lanesel):
                    need = max(need, 4)
                if n.kind == 'valu' and (hs & n.reads):
                    need = max(need, 2)
                if n.kind == 'vmem' and (hs & n.reads):
                    need = max(need, 5)
            if n.kind == 'valu' and (hv & n.reads):
                b = n.op.replace('_e32', '').replace('_e64', '')
                if b in ('v_readlane_b32', 'v_readfirstlane_b32'):
                    need = max(need, 1)
                if b.startswith('v_permlane') or n.dpp:
                    need = max(need, 2)
        if h.kind == 'mfma':
            p = h.passes
            if n.kind == 'mfma':
                if hv & n.srcc:
                    if n.srcc == h.writes and n.passes == p:
                        need = max(need, 2 if p == 2 else 0)
                    else:
                        need = max(need, OVL_C[p])
                ab = n.reads - n.srcc
                if hv & ab:
                    need = max(need, RAW_D[p])
                if (hv & n.writes) and not (n.srcc == h.writes and n.passes == p):
                    need = max(need, RAW_D[p])
            elif n.kind in ('valu', 'vmem', 'ds'):
                if hv & (n.reads | n.writes):
                    need = max(need, RAW_D[p])
            if n.kind == 'valu' and h.srcc and (h.srcc & n.writes):
                need = max(need, WAR_C[p])
        if h.kind == 'salu' and ('m0', 0) in h.writes:
            if n.ldsdma or n.op.startswith('s_sendmsg') or 'addtid' in n.op or n.op.startswith('s_movrel'):
                need = max(need, 1)
        if h.kind == 'vmem' and h.sdata:
            if h.sdata & n.writes:
                need = max(need, 2 if n.kind == 'valu' else 1)
        return need
    def _maxneed(self, h):
        if h.kind == 'mfma':
            return RAW_D[h.passes]
        if h.kind == 'valu':
            m = 2
            if any(r[0] in ('s', 'vcc') for r in h.writes): m = 5
            return m
        if h.kind == 'salu' and ('m0', 0) in h.writes:
            return 1
        if h.kind == 'vmem' and h.sdata:
            return 2
        return 0
    def _pad(self, k):
        while k > 0:
            n = min(k, 16)
            self.lines.append('  s_nop %d' % (n - 1))
            self.pos += n; self.npad += n
            k -= n
    def _wait_for(self, ins):
        touched = {r for r in (ins.reads | ins.writes) if r[0] in ('v', 'a', 's')}
        vm_need = None; lg_need = None
        for idx, d in enumerate(self.vmq):
            if d & touched:
                vm_need = len(self.vmq) - 1 - idx
        for idx, (d, sm) in enumerate(self.lgq):
            if d & touched:
                lg_need = len(self.lgq) - 1 - idx
        if lg_need is not None and any(sm for _, sm in self.lgq):
            lg_need = 0
        if vm_need is not None or lg_need is not None:
            self.waitcnt(vm=vm_need, lgkm=lg_need)
    def waitcnt(self, vm=None, lgkm=None):
        parts = []
        if vm is not None:
            vm = min(vm, 63)
            if vm < len(self.vmq) or True:
                parts.append('vmcnt(%d)' % vm)
            del self.vmq[:max(0, len(self.vmq) - vm)]
        if lgkm is not None:
            if any(sm for _, sm in self.lgq):
                lgkm = 0
            lgkm = min(lgkm, 15)
            parts.append('lgkmcnt(%d)' % lgkm)
            del self.lgq[:max(0, len(self.lgq) - lgkm)]
        if parts:
            self._append('s_waitcnt ' + ' '.join(parts), kind='ctl')
    def _append(self, text, kind='ctl'):
        i = Ins(); i.op = text.split()[0]; i.kind = kind; i.reads = set(); i.writes = set(); i.passes = 0
        i.srcc = None; i.trans = False; i.dpp = False; i.lanesel = set(); i.sdata = set(); i.ldsdma = False; i.text = text
        i.pos = self.pos
        self.lines.append('  ' + text)
        self.pos += 1; self.ninstr += 1
        self.hist.append(i)
        if len(self.hist) > 40:
            self.hist.pop(0)
    def __call__(self, text):
        i = self._classify(text)
        if i.op == 's_nop':
            k = int(text.split()[1], 0) + 1
            self.lines.append('  ' + text); self.pos += k; self.ninstr += 1
            return
        if i.op == 's_waitcnt':
            raise ValueError('use asm.waitcnt()')
        self._wait_for(i)
        need = 0
        for h in self.hist:
            nd = self._need(h, i)
            if nd:
                have = self.pos - h.pos - 1
                need = max(need, nd - have)
        if need > 0:
            self._pad(need)
        i.pos = self.pos
        self.lines.append('  ' + text)
        self.pos += 1; self.ninstr += 1
        self.hist.append(i)
        if len(self.hist) > 40:
            self.hist.pop(0)
        if i.kind == 'vmem':
            self.vmq.append(set(i.writes))
            if len(self.vmq) > 63:
                raise ValueError('too many outstanding vmem ops')
        elif i.kind == 'ds':
            self.lgq.append((set(i.writes), False))
            while len(self.lgq) > 15:
                self.lgq.pop(0)
        elif i.kind == 'smem':
            self.lgq.append((set(i.writes), True))
    def many(self, s):
        for l in s.strip().splitlines():
            l = l.strip()
            if not l or l.startswith(';'):
                continue
            self(l)
    def hazard_flush(self):
        need = 0
        for h in self.hist:
            need = max(need, self._maxneed(h) - (self.pos - h.pos - 1))
        if need > 0:
            self._pad(need)
        self.hist = []
    def drain(self):
        if self.vmq or self.lgq:
            self.waitcnt(vm=0 if self.vmq else None, lgkm=0 if self.lgq else None)
    def barrier(self, lds=True, vm=None):
        if lds and self.lgq:
            self.waitcnt(lgkm=0)
        if vm is not None:
            self.waitcnt(vm=vm)
        self._append('s_barrier')
    def label(self, name):
        self.drain(); self.hazard_flush()
        self.lines.append(name + ':')
    def label_nodrain(self, name):
        self.hazard_flush()
        self.lines.append(name + ':')
    def branch_nodrain(self, text):
        self.hazard_flush()
        self(text)
    def branch(self, text):
        self.drain(); self.hazard_flush()
        self(text)
    def text(self):
        return '\n'.join(self.lines) + '\n'
```

```python
from asmgen import Asm

S = 2048; D = 576; H = 32; DH = 18
WS_PHIQA      = 0x000000
WS_PHIQA_LEFT = 0x200000
WS_PHIQB      = 0x240000
WS_PHIQB_LEFT = 0x640000
WS_KVA        = 0x6C0000
WS_KVB        = 0x6D0000
WS_G          = 0x6F0000
WS_WOF        = 0x700000
WS_DBG        = 0x1000000
KVA_HEAD = 1536
KVB_HEAD = 2816
LOG2E = 0x3fb8aa3b

def kdesc(name, vgpr, sgpr=102):
    acc = (vgpr + 3) // 4 * 4
    return f""".p2align 6
.amdhsa_kernel {name}
  .amdhsa_next_free_vgpr {vgpr}
  .amdhsa_next_free_sgpr {sgpr}
  .amdhsa_accum_offset {acc}
  .amdhsa_group_segment_fixed_size 0
  .amdhsa_kernarg_size 88
  .amdhsa_user_sgpr_count 2
  .amdhsa_user_sgpr_kernarg_segment_ptr 1
  .amdhsa_system_sgpr_workgroup_id_x 1
.end_amdhsa_kernel
"""

def srd(a, d, lo, hi, nrec):
    a(f"s_mov_b32 s{d}, s{lo}")
    a(f"s_mov_b32 s{d+1}, s{hi}")
    a(f"s_mov_b32 s{d+2}, {nrec}")
    a(f"s_mov_b32 s{d+3}, 0x00020000")
```

```python
from gen_common import *

STAGE = 47104
XB = 16384
WSTR = 480
TSTR = 464
PSTR = 400
P_OFF = 128 * TSTR
LDS_K1 = 3 * STAGE
NCH = 9

sX, sW, sWS, sDBG, sWPHI, sGW = 8, 12, 16, 20, 36, 40
sWOA, sWOB = 88, 92
sRB, sCG, sBR, sHG, sWV = 44, 45, 46, 47, 48
sL, sEPS, sONEM, sNL = 70, 72, 74, 84
sMB, sML, sMH, sM01 = 76, 78, 80, 82
sLO = 86
WPHI = 226
WPHI_HI = 234

def vr(b, n=1):
    return f"v{b}" if n == 1 else f"v[{b}:{b+n-1}]"

def phi_multi(a, regs, tb):
    def seq(x, t):
        t0, t1, t2, t3, t4, t5 = range(t, t + 6)
        return [
            f"v_pk_max_i16 v{t4}, v{x}, 0",
            f"v_pk_min_i16 v{t5}, v{x}, 0",
            f"v_lshlrev_b32 v{t0}, 16, v{t5}",
            f"v_and_b32 v{t1}, 0xffff0000, v{t5}",
            f"v_pk_mul_f32 v[{t0}:{t1}], v[{t0}:{t1}], s[{sL}:{sL+1}]",
            f"v_exp_f32 v{t0}, v{t0}",
            f"v_exp_f32 v{t1}, v{t1}",
            f"v_lshlrev_b32 v{t2}, 16, v{t4}",
            f"v_and_b32 v{t3}, 0xffff0000, v{t4}",
            f"v_pk_add_f32 v[{t0}:{t1}], v[{t0}:{t1}], v[{t2}:{t3}]",
            f"v_cvt_pk_bf16_f32 v{t4}, v{t0}, v{t1}",
            f"v_lshlrev_b32 v{t0}, 16, v{t4}",
            f"v_and_b32 v{t1}, 0xffff0000, v{t4}",
            f"v_pk_add_f32 v[{t0}:{t1}], v[{t0}:{t1}], s[{sEPS}:{sEPS+1}]",
            f"v_cvt_pk_bf16_f32 v{x}, v{t0}, v{t1}",
        ]
    for i in range(0, len(regs), 2):
        s1 = seq(regs[i], tb)
        s2 = seq(regs[i + 1], tb + 6) if i + 1 < len(regs) else []
        for k in range(len(s1)):
            a(s1[k])
            if s2:
                a(s2[k])

def kv_atomics(a, D, voff, sbase, sbase_z, rowb, label):
    def at(r, imm):
        a(f"buffer_atomic_add_f32 v{D+r}, v{voff}, s[{sWS}:{sWS+3}], s{sbase} offen offset:{imm}")
    a(f"s_mov_b64 exec, s[{sM01}:{sM01+1}]")
    for r in (0, 1):
        at(r, r * rowb)
    a(f"s_mov_b64 exec, s[{sMB}:{sMB+1}]")
    for r in range(2, 8):
        at(r, ((r & 3) + 8 * (r >> 2)) * rowb)
    a(f"s_mov_b64 exec, s[{sML}:{sML+1}]")
    for r in (8, 9):
        at(r, ((r & 3) + 8 * (r >> 2)) * rowb)
    a("s_cmp_eq_u32 s60, 0")
    a.branch_nodrain(f"s_cbranch_scc1 {label}")
    for r in (10, 11):
        at(r, ((r & 3) + 8 * (r >> 2)) * rowb)
    a.label_nodrain(label)
    a(f"s_mov_b64 exec, s[{sMH}:{sMH+1}]")
    a(f"buffer_atomic_add_f32 v{D+14}, v{voff}, s[{sWS}:{sWS+3}], s{sbase_z} offen offset:{14*rowb}")
    a("s_mov_b64 exec, -1")

def poll_flag(a, vreg, label):
    a(f"v_readfirstlane_b32 s62, v{vreg}")
    a.label(label + "_LOOP")
    a("s_cmp_lg_u32 s62, 0")
    a.branch(f"s_cbranch_scc1 {label}_OK")
    a(f"buffer_load_dword v{vreg}, off, s[{sDBG}:{sDBG+3}], s61 sc0 sc1")
    a(f"v_readfirstlane_b32 s62, v{vreg}")
    a.branch(f"s_branch {label}_LOOP")
    a.label(label + "_OK")

def kv_stream(a, vA, offA, gA, vB, offB, gB, D):
    AB, BB = 64, 80
    def reads(g):
        b = g % 2
        return [f"ds_read_b64_tr_b16 {vr(AB+b*4,2)}, v{vA} offset:{offA+g*gA}",
                f"ds_read_b64_tr_b16 {vr(AB+b*4+2,2)}, v{vA} offset:{offA+g*gA+gA//4}",
                f"ds_read_b64_tr_b16 {vr(BB+b*4,2)}, v{vB} offset:{offB+g*gB}",
                f"ds_read_b64_tr_b16 {vr(BB+b*4+2,2)}, v{vB} offset:{offB+g*gB+gB//4}"]
    for r in reads(0):
        a(r)
    for g in range(8):
        b = g % 2
        if g + 1 < 8:
            for r in reads(g + 1):
                a(r)
        for j in range(4):
            a(f"v_cndmask_b32 v{AB+b*4+j}, v{AB+b*4+j}, v63, s[{sONEM}:{sONEM+1}]")
        a(f"v_mfma_f32_32x32x16_bf16 {vr(D,16)}, {vr(AB+b*4,4)}, {vr(BB+b*4,4)}, {'0' if g == 0 else vr(D,16)}")

def gen_k1(debug=None):
    a = Asm()
    a.raw(".globl k1_kernel\n.p2align 8\n.type k1_kernel,@function\nk1_kernel:")
    a("s_cmp_ge_u32 s2, 256")
    a("s_cbranch_scc1 K1_END")
    a("s_load_dwordx2 s[4:5], s[0:1], 0")
    a("s_load_dwordx2 s[6:7], s[0:1], 8")
    a("s_load_dwordx2 s[24:25], s[0:1], 32")
    a("s_load_dwordx2 s[26:27], s[0:1], 40")
    a("s_load_dwordx2 s[28:29], s[0:1], 56")
    a("s_load_dwordx2 s[30:31], s[0:1], 72")
    a("s_load_dwordx2 s[32:33], s[0:1], 80")
    a("s_load_dwordx2 s[64:65], s[0:1], 16")
    a("s_load_dwordx2 s[66:67], s[0:1], 48")
    a(f"s_lshr_b32 s{sRB}, s2, 4")
    a(f"s_and_b32 s{sCG}, s2, 15")
    a(f"s_lshr_b32 s{sBR}, s{sCG}, 3")
    a(f"s_and_b32 s{sHG}, s{sCG}, 7")
    a("v_lshrrev_b32 v2, 6, v0")
    a(f"v_readfirstlane_b32 s{sWV}, v2")
    a("v_and_b32 v1, 63, v0")
    a(f"s_mov_b32 s{sL}, {LOG2E}")
    a(f"s_mov_b32 s{sL+1}, {LOG2E}")
    a(f"s_mov_b32 s{sEPS}, 0x358637bd")
    a(f"s_mov_b32 s{sEPS+1}, 0x358637bd")
    a(f"s_mov_b32 s{sONEM}, 0x40000000")
    a(f"s_mov_b32 s{sONEM+1}, 0x40000000")
    a(f"s_mov_b32 s{sNL}, {LOG2E | 0x80000000}")
    a(f"s_mov_b32 s{sNL+1}, {LOG2E | 0x80000000}")
    a(f"s_mov_b32 s{sLO}, -1")
    a(f"s_mov_b32 s{sLO+1}, 0")
    a.waitcnt(lgkm=0)
    srd(a, sX, 4, 5, 2359296)
    a(f"s_cmp_eq_u32 s{sBR}, 0")
    a("s_cselect_b32 s3, s6, s24")
    a("s_cselect_b32 s34, s7, s25")
    srd(a, sW, 3, 34, 1990656)
    srd(a, sWS, 32, 33, 268435456)
    srd(a, sDBG, 30, 31, 256)
    srd(a, sWPHI, 26, 27, 20736)
    srd(a, sGW, 28, 29, 1152)
    srd(a, sWOA, 64, 65, 663552)
    srd(a, sWOB, 66, 67, 663552)
    a(f"s_and_b32 s49, s{sWV}, 3")
    a(f"s_lshl_b32 s50, s{sHG}, 2")
    a("s_add_u32 s49, s49, s50")
    a("s_mul_i32 s49, s49, 648")
    a("v_and_b32 v3, 31, v1")
    a("v_lshrrev_b32 v4, 5, v1")
    a("v_mul_u32_u24 v5, 288, v4")
    a("v_lshl_add_u32 v5, v3, 1, v5")
    a("v_mov_b32 v6, 0x40000000")
    a("v_cmp_gt_u32 vcc, 18, v3")
    a("v_cndmask_b32 v5, v6, v5, vcc")
    a("v_lshlrev_b32 v7, 1, v3")
    a("v_add_u32 v7, 576, v7")
    a("v_cmp_eq_u32 s[50:51], 0, v4")
    a("s_and_b64 vcc, vcc, s[50:51]")
    a("v_cndmask_b32 v7, v6, v7, vcc")
    for j in range(8):
        a(f"buffer_load_ushort v{(WPHI if j % 2 == 0 else WPHI_HI)+j//2}, v5, s[{sWPHI}:{sWPHI+3}], s49 offen offset:{j*36}")
    a(f"buffer_load_ushort v{WPHI+4}, v7, s[{sWPHI}:{sWPHI+3}], s49 offen")
    a(f"buffer_load_ushort v{WPHI_HI+4}, v7, s[{sWPHI}:{sWPHI+3}], s49 offen offset:36")
    for j in range(5, 8):
        a(f"v_mov_b32 v{WPHI+j}, 0")
    NPRE = 10
    a(f"s_cmp_ge_u32 s{sWV}, 4")
    a.branch_nodrain("s_cbranch_scc1 K1_NONCOMPUTE")
    pre_vmq = list(a.vmq)

    ACC = 16; XBUF = 128; WBUF = 160; AX = 216; AW = 222; AT = 225
    acc = lambda rt, ct: ACC + (ct * 4 + rt) * 4
    a(f"s_lshr_b32 s49, s{sWV}, 1")
    a(f"s_and_b32 s50, s{sWV}, 1")
    a("v_and_b32 v3, 15, v1")
    a("v_lshrrev_b32 v4, 4, v1")
    a("v_and_b32 v5, 7, v3")
    a("v_xor_b32 v5, v4, v5")
    a("v_lshlrev_b32 v5, 4, v5")
    a("v_lshl_add_u32 v5, v3, 7, v5")
    a("s_lshl_b32 s51, s49, 13")
    a("v_add_u32 v5, s51, v5")
    for st in range(3):
        a(f"v_add_u32 v{AX+st*2}, {st*STAGE}, v5")
        a(f"v_xor_b32 v{AX+st*2+1}, 64, v{AX+st*2}")
    a("v_lshrrev_b32 v5, 1, v4")
    a("v_lshlrev_b32 v5, 4, v5")
    a("v_and_b32 v6, 1, v4")
    a("v_lshl_add_u32 v5, v6, 2, v5")
    a("v_lshrrev_b32 v6, 2, v3")
    a("v_add_u32 v5, v5, v6")
    a(f"v_mul_u32_u24 v5, {WSTR}, v5")
    a("v_and_b32 v6, 3, v3")
    a("v_lshl_add_u32 v5, v6, 3, v5")
    a("s_mul_i32 s51, s50, 224")
    a(f"s_add_u32 s51, s51, {XB}")
    a("v_add_u32 v5, s51, v5")
    for st in range(3):
        a(f"v_add_u32 v{AW+st}, {st*STAGE}, v5")
    a("s_lshl_b32 s51, s49, 6")
    a("v_add_u32 v5, s51, v3")
    a(f"v_mul_u32_u24 v5, {TSTR}, v5")
    a("s_mul_i32 s51, s50, 224")
    a("v_lshl_add_u32 v6, v4, 3, s51")
    a(f"v_add_u32 v{AT}, v5, v6")

    def reads(i):
        c, ks, b, st = i // 2, i % 2, i % 2, (i // 2) % 3
        L = []
        for rt in range(4):
            L.append(f"ds_read_b128 {vr(XBUF+b*16+rt*4,4)}, v{AX+st*2+ks} offset:{rt*2048}")
        for ct in range(7):
            for hf in range(2):
                L.append(f"ds_read_b64_tr_b16 {vr(WBUF+b*28+ct*4+hf*2,2)}, v{AW+st} offset:{ks*32*WSTR+hf*8*WSTR+ct*32}")
        order = [L[0], L[4], L[5], L[1], L[2], L[3]] + L[6:]
        return order

    a.barrier(lds=False)
    for r in reads(0):
        a(r)
    NST = 2 * NCH
    for i in range(NST):
        b = i % 2
        nxt = []
        if i + 1 < NST:
            nxt = reads(i + 1)
        k = 0
        for ct in range(7):
            for rt in range(4):
                srcc = "0" if i == 0 else vr(acc(rt, ct), 4)
                if debug != "nomfma" or i < 1:
                    a(f"v_mfma_f32_16x16x32_bf16 {vr(acc(rt,ct),4)}, {vr(WBUF+b*28+ct*4,4)}, {vr(XBUF+b*16+rt*4,4)}, {srcc}")
                k += 1
                if k == 1 and nxt and (i + 1) % 2 == 0:
                    a.barrier(lds=True)
                if nxt and k >= 2:
                    a(nxt.pop(0))
        for r in nxt:
            a(r)
    for rt in range(4):
        for ct in range(7):
            A0 = acc(rt, ct)
            a(f"v_cvt_pk_bf16_f32 v{A0}, v{A0}, v{A0+1}")
            a(f"v_cvt_pk_bf16_f32 v{A0+1}, v{A0+2}, v{A0+3}")
            a(f"ds_write_b64 v{AT}, {vr(A0,2)} offset:{rt*16*TSTR+ct*32}")
    a.branch("s_branch K1_POST")

    a.label_nodrain("K1_NONCOMPUTE")
    a.vmq = list(pre_vmq)
    a(f"s_cmp_eq_u32 s{sWV}, 7")
    a.branch_nodrain("s_cbranch_scc1 K1_AUX")
    a(f"s_cmp_eq_u32 s{sWV}, 4")
    a.branch_nodrain("s_cbranch_scc0 K1_WLOAD")
    a("v_lshrrev_b32 v3, 3, v1")
    a("v_and_b32 v4, 7, v1")
    a("v_and_b32 v5, 7, v3")
    a("v_xor_b32 v4, v4, v5")
    a("v_lshlrev_b32 v4, 4, v4")
    a("v_mul_u32_u24 v3, 1152, v3")
    a("v_add_u32 v3, v3, v4")
    a(f"s_mul_i32 s51, s{sRB}, {128*1152}")
    def xissue(c):
        st = c % 3
        for i in range(16):
            a(f"s_add_u32 s52, s51, {c*128 + i*9216}")
            a(f"s_mov_b32 m0, {st*STAGE + i*1024}")
            if debug != "noload":
                a(f"buffer_load_dwordx4 v3, s[{sX}:{sX+3}], s52 offen lds")
    xissue(0); xissue(1)
    for c in range(NCH):
        a.waitcnt(vm=16 if c + 1 < NCH else 0)
        a.barrier(lds=False)
        if c + 2 < NCH:
            xissue(c + 2)
    a.branch("s_branch K1_POST")
    a.label_nodrain("K1_WLOAD")
    a.vmq = list(pre_vmq)
    a(f"s_sub_u32 s53, s{sWV}, 5")
    a("s_lshl_b32 s54, s53, 6")
    VW = 16
    for t in range(15):
        a(f"v_add_u32 v3, {128*t}, v1")
        a("v_add_u32 v3, s54, v3")
        a("v_mul_u32_u24 v4, 2185, v3")
        a("v_lshrrev_b32 v4, 16, v4")
        a("v_mul_u32_u24 v5, 30, v4")
        a("v_sub_u32 v5, v3, v5")
        a("v_mul_u32_u24 v6, 7282, v5")
        a("v_lshrrev_b32 v6, 16, v6")
        a("v_mul_u32_u24 v7, 9, v6")
        a("v_sub_u32 v7, v5, v7")
        a("v_and_b32 v8, 4, v4")
        a("v_lshlrev_b32 v8, 1, v8")
        a("v_and_b32 v9, 8, v4")
        a("v_lshrrev_b32 v9, 1, v9")
        a("v_and_b32 v10, 0xfffffff3, v4")
        a("v_or3_b32 v10, v10, v8, v9")
        a("v_mul_u32_u24 v10, 3456, v10")
        a("v_mul_u32_u24 v6, 1152, v6")
        a("v_lshl_add_u32 v7, v7, 4, v6")
        a("v_add_u32 v10, v10, v7")
        a("v_cmp_le_u32 vcc, 27, v5")
        a("v_mov_b32 v11, 0x40000000")
        a(f"v_cndmask_b32 v{VW+t}, v10, v11, vcc")
    a(f"s_mul_i32 s51, s{sHG}, 144")
    a("s_lshl_b32 s55, s53, 10")
    def wissue(c):
        st = c % 3
        a(f"s_add_u32 s52, s51, {c*64*3456}")
        for t in range(15):
            a(f"s_add_u32 m0, s55, {st*STAGE + XB + t*2048}")
            if debug != "noload":
                a(f"buffer_load_dwordx4 v{VW+t}, s[{sW}:{sW+3}], s52 offen lds")
    wissue(0); wissue(1)
    for c in range(NCH):
        a.waitcnt(vm=15 if c + 1 < NCH else 0)
        a.barrier(lds=False)
        if c + 2 < NCH:
            wissue(c + 2)
    a.branch("s_branch K1_POST")

    a.label_nodrain("K1_AUX")
    a.vmq = list(pre_vmq)
    a("s_mov_b64 exec, 1")
    a("v_mov_b32 v2, 1")
    a(f"s_lshl_b32 s49, s{sCG}, 2")
    a("v_mov_b32 v3, s49")
    a(f"buffer_atomic_add v2, v3, s[{sDBG}:{sDBG+3}], 0 offen sc0")
    a("s_mov_b64 exec, -1")
    a("v_lshrrev_b32 v4, 3, v1")
    a("v_and_b32 v5, 7, v1")
    a("v_mul_u32_u24 v6, 144, v5")
    a("v_mul_u32_u24 v4, 1152, v4")
    a("v_add_u32 v4, v4, v6")
    a(f"s_lshl_b32 s50, s{sRB}, 7")
    a(f"s_lshl_b32 s51, s{sCG}, 3")
    a("s_add_u32 s50, s50, s51")
    a("s_mul_i32 s51, s50, 1152")
    GX, GWR = 16, 52
    for i in range(9):
        a(f"buffer_load_dwordx4 {vr(GX+4*i,4)}, v4, s[{sX}:{sX+3}], s51 offen offset:{16*i}")
    for i in range(9):
        a(f"buffer_load_dwordx4 {vr(GWR+4*i,4)}, v6, s[{sGW}:{sGW+3}], 0 offen offset:{16*i}")
    a("v_lshrrev_b32 v14, 4, v1")
    a("v_mul_u32_u24 v14, 9216, v14")
    a("v_and_b32 v15, 15, v1")
    a("v_lshl_add_u32 v14, v15, 1, v14")
    a("v_add_u32 v15, 4608, v14")
    WOR = 92
    def wo_scalars(i):
        a(f"s_add_u32 s59, s2, {256*i}")
        a("s_mul_i32 s56, s59, 3641")
        a("s_lshr_b32 s56, s56, 16")
        a("s_mul_i32 s57, s56, 18")
        a("s_sub_u32 s57, s59, s57")
        a("s_mul_i32 s57, s57, 36864")
        a("s_lshl_b32 s56, s56, 5")
        a("s_add_u32 s56, s56, s57")
        a("s_lshl_b32 s57, s59, 10")
        a("s_add_u32 s57, s57, s58")
    def wo_loads(srd_, n):
        for i in range(n):
            if i == 2:
                a("s_cmp_ge_u32 s2, 136")
                a.branch_nodrain(f"s_cbranch_scc1 K1_WOL{srd_}")
            wo_scalars(i)
            for j in range(8):
                a(f"buffer_load_ushort v{WOR+8*i+j}, v{14 if j < 4 else 15}, s[{srd_}:{srd_+3}], s56 offen offset:{(j%4)*1152}")
        a.label_nodrain(f"K1_WOL{srd_}")
    def wo_store(srd_, n):
        a("v_lshlrev_b32 v13, 4, v1")
        for i in range(n):
            if i == 2:
                a("s_cmp_ge_u32 s2, 136")
                a.branch_nodrain(f"s_cbranch_scc1 K1_WOS{srd_}")
            wo_scalars(i)
            for j in range(4):
                a(f"v_lshl_or_b32 v{WOR+8*i+j}, v{WOR+8*i+2*j+1}, 16, v{WOR+8*i+2*j}")
            a(f"buffer_store_dwordx4 {vr(WOR+8*i,4)}, v13, s[{sWS}:{sWS+3}], s57 offen")
        a.label_nodrain(f"K1_WOS{srd_}")
    a(f"s_mov_b32 s58, {WS_WOF}")
    wo_loads(sWOA, 3)
    a.barrier(lds=False)
    a.barrier(lds=False)
    a.waitcnt(vm=0)
    a("v_readfirstlane_b32 s63, v2")
    a("s_cmp_lg_u32 s63, 0")
    a.branch_nodrain("s_cbranch_scc1 K1_AUX_NZ")
    a("v_mov_b32 v8, 0")
    a("v_mov_b32 v9, 0")
    a("v_mov_b32 v10, 0")
    a("v_mov_b32 v11, 0")
    a("v_lshlrev_b32 v7, 4, v1")
    a(f"s_mul_i32 s52, s{sHG}, {4*KVA_HEAD}")
    a(f"s_add_u32 s52, s52, {WS_KVA}")
    a(f"s_mul_i32 s53, s{sHG}, {4*KVB_HEAD}")
    a(f"s_add_u32 s53, s53, {WS_KVB}")
    for i in range(6):
        if i == 4:
            a("s_add_u32 s52, s52, 4096")
        a(f"buffer_store_dwordx4 v[8:11], v7, s[{sWS}:{sWS+3}], s52 offen offset:{(i%4)*1024} sc0 sc1")
    a(f"s_cmp_eq_u32 s{sBR}, 0")
    a.branch_nodrain("s_cbranch_scc1 K1_AUX_NZ")
    for i in range(11):
        if i in (4, 8):
            a("s_add_u32 s53, s53, 4096")
        a(f"buffer_store_dwordx4 v[8:11], v7, s[{sWS}:{sWS+3}], s53 offen offset:{(i%4)*1024} sc0 sc1")
    a.label_nodrain("K1_AUX_NZ")
    wo_store(sWOA, 3)
    a(f"s_mov_b32 s58, {WS_WOF + 648*1024}")
    wo_loads(sWOB, 3)
    a.barrier(lds=False)
    a("v_mov_b32 v12, 0")
    a("v_mov_b32 v13, 0")
    def gate_part(lo, hi):
        for i in range(lo, hi):
            x, w = GX + i, GWR + i
            a(f"v_lshlrev_b32 v88, 16, v{x}")
            a(f"v_and_b32 v89, 0xffff0000, v{x}")
            a(f"v_lshlrev_b32 v90, 16, v{w}")
            a(f"v_and_b32 v91, 0xffff0000, v{w}")
            a("v_pk_mul_f32 v[88:89], v[88:89], v[90:91]")
            a("v_cvt_pk_bf16_f32 v90, v88, v89")
            a("v_lshlrev_b32 v88, 16, v90")
            a("v_and_b32 v89, 0xffff0000, v90")
            a("v_pk_add_f32 v[12:13], v[12:13], v[88:89]")
    gate_part(0, 12)
    a.barrier(lds=False)
    gate_part(12, 24)
    a.barrier(lds=False)
    gate_part(24, 36)
    a("v_add_f32 v12, v12, v13")
    a("v_add_f32_dpp v12, v12, v12 quad_perm:[1,0,3,2] row_mask:0xf bank_mask:0xf")
    a("v_add_f32_dpp v12, v12, v12 quad_perm:[2,3,0,1] row_mask:0xf bank_mask:0xf")
    a("v_add_f32_dpp v12, v12, v12 row_half_mirror row_mask:0xf bank_mask:0xf")
    a("v_cvt_pk_bf16_f32 v12, v12, v12")
    a("v_lshlrev_b32 v12, 16, v12")
    a(f"v_mul_f32 v12, s{sNL}, v12")
    a("v_exp_f32 v12, v12")
    a("v_add_f32 v12, 1.0, v12")
    a("v_rcp_f32 v12, v12")
    a("v_cvt_pk_bf16_f32 v12, v12, v12")
    a("v_lshlrev_b32 v12, 16, v12")
    a("v_lshrrev_b32 v4, 3, v1")
    a("v_lshlrev_b32 v4, 2, v4")
    a("s_lshl_b32 s51, s50, 2")
    a(f"s_add_u32 s51, s51, {WS_G}")
    a("s_mov_b32 s52, 0x01010101")
    a("s_mov_b32 s53, 0x01010101")
    a("s_mov_b64 exec, s[52:53]")
    a(f"buffer_store_dword v12, v4, s[{sWS}:{sWS+3}], s51 offen")
    a("s_mov_b64 exec, -1")
    a.barrier(lds=False)
    a("s_cmp_lg_u32 s63, 0")
    a.branch_nodrain("s_cbranch_scc1 K1_AUX_NF")
    a.waitcnt(vm=0)
    a(f"s_lshl_b32 s49, s{sCG}, 2")
    a("s_add_u32 s49, s49, 64")
    a("s_mov_b64 exec, 1")
    a("v_mov_b32 v2, 1")
    a(f"buffer_store_dword v2, off, s[{sDBG}:{sDBG+3}], s49 sc0 sc1")
    a("s_mov_b64 exec, -1")
    a.label_nodrain("K1_AUX_NF")
    a.waitcnt(vm=0)
    wo_store(sWOB, 3)
    for c in range(6, NCH):
        a.barrier(lds=False)
    a.branch("s_branch K1_POST")

    a.label("K1_POST")
    a.barrier(lds=True)
    if debug == "dumpT":
        a(f"s_mul_i32 s51, s2, 65536")
        a(f"s_add_u32 s51, s51, {WS_DBG}")
        a("v_lshlrev_b32 v3, 4, v0")
        for it in range((P_OFF + 8191) // 8192):
            a(f"ds_read_b128 v[4:7], v3 offset:{it*8192}")
            a(f"s_add_u32 s52, s51, {it*8192}")
            a(f"buffer_store_dwordx4 v[4:7], v3, s[{sWS}:{sWS+3}], s52 offen")
        a.drain()
        a.branch("s_branch K1_END")
    a(f"s_lshl_b32 s61, s{sCG}, 2")
    a("s_add_u32 s61, s61, 64")
    a(f"buffer_load_dword v62, off, s[{sDBG}:{sDBG+3}], s61 sc0 sc1")
    a("v_mov_b32 v63, 0x3f803f80")
    a("v_and_b32 v8, 31, v1")
    a("v_lshrrev_b32 v9, 5, v1")
    a("v_and_b32 v10, 15, v1")
    a("v_lshrrev_b32 v11, 4, v1")
    a("v_lshrrev_b32 v12, 1, v11")
    a("v_lshlrev_b32 v12, 3, v12")
    a("v_lshrrev_b32 v13, 2, v10")
    a("v_add_u32 v12, v12, v13")
    a("v_and_b32 v13, 1, v11")
    a("v_lshlrev_b32 v13, 5, v13")
    a("v_and_b32 v14, 3, v10")
    a("v_lshl_add_u32 v13, v14, 3, v13")
    a(f"s_and_b32 s49, s{sWV}, 3")
    a("s_and_b32 s60, s49, 1")
    a("s_lshl_b32 s60, s60, 1")
    a(f"s_lshl_b32 s50, s{sHG}, 2")
    a("s_add_u32 s50, s50, s49")
    a(f"s_cmp_eq_u32 s{sBR}, 1")
    a.branch_nodrain("s_cbranch_scc1 K1_POST_B")
    post_vmq = list(a.vmq)

    a(f"s_cmp_ge_u32 s{sWV}, 4")
    a.branch_nodrain("s_cbranch_scc1 K1_PA_Q")
    a(f"v_mul_u32_u24 v2, {TSTR}, v1")
    a("s_mul_i32 s51, s49, 36")
    a("s_add_u32 s51, s51, 144")
    a("v_add_u32 v2, s51, v2")
    KR = [16, 20, 24, 28, 32, 36]
    for t in range(2):
        a(f"ds_read_b128 {vr(16+12*t,4)}, v2 offset:{t*64*TSTR}")
        a(f"ds_read_b128 {vr(20+12*t,4)}, v2 offset:{t*64*TSTR+16}")
        a(f"ds_read_b32 v{24+12*t}, v2 offset:{t*64*TSTR+32}")
    phi_multi(a, list(range(16, 25)) + list(range(28, 37)), 40)
    for t in range(2):
        a(f"ds_write_b128 v2, {vr(16+12*t,4)} offset:{t*64*TSTR}")
        a(f"ds_write_b128 v2, {vr(20+12*t,4)} offset:{t*64*TSTR+16}")
        a(f"ds_write_b32 v2, v{24+12*t} offset:{t*64*TSTR+32}")
    a(f"v_mul_u32_u24 v3, {TSTR}, v12")
    a("v_add_u32 v3, v3, v13")
    a("s_sub_u32 s51, s51, s60")
    a("s_sub_u32 s51, s51, s60")
    a("v_add_u32 v3, s51, v3")
    kv_stream(a, 3, 144, 16 * TSTR, 3, 0, 16 * TSTR, 96)
    a("v_mul_u32_u24 v4, 320, v9")
    a("v_lshl_add_u32 v4, v8, 2, v4")
    a("s_lshl_b32 s51, 0x3ffff, s60")
    a(f"s_mov_b32 s{sMB}, s51")
    a(f"s_mov_b32 s{sMB+1}, s51")
    a(f"s_mov_b32 s{sML}, s51")
    a(f"s_mov_b32 s{sML+1}, 0")
    a(f"s_mov_b32 s{sMH}, 0")
    a(f"s_mov_b32 s{sMH+1}, s51")
    a("s_cmp_eq_u32 s60, 0")
    a(f"s_cselect_b32 s{sM01}, s51, 0")
    a(f"s_mov_b32 s{sM01+1}, s51")
    a(f"s_mul_i32 s52, s50, {KVA_HEAD}")
    a(f"s_add_u32 s52, s52, {WS_KVA}")
    a("s_lshl_b32 s53, s60, 2")
    a("s_sub_u32 s53, s52, s53")
    a("s_mul_i32 s54, s60, 84")
    a("s_sub_u32 s52, s52, s54")
    poll_flag(a, 62, "K1_PA_POLL")
    kv_atomics(a, 96, 4, 52, 53, 80, "K1_PA_AT")
    a.branch("s_branch K1_END")

    a.label_nodrain("K1_PA_Q")
    a.vmq = list(post_vmq)
    a(f"s_sub_u32 s51, s{sWV}, 4")
    a("s_lshl_b32 s52, s51, 5")
    a("v_add_u32 v2, s52, v8")
    a(f"v_mul_u32_u24 v2, {TSTR}, v2")
    a("v_lshl_add_u32 v3, v9, 4, v2")
    a("v_mul_u32_u24 v4, 72, v9")
    a("v_add_u32 v4, v4, v2")
    for hl in range(4):
        a(f"ds_read_b128 {vr(16+4*hl,4)}, v3 offset:{36*hl}")
    a("ds_read_b32 v32, v4 offset:32")
    a("ds_read_b32 v33, v4 offset:68")
    phi_multi(a, list(range(16, 34)), 40)
    a(f"s_lshl_b32 s52, s{sRB}, 2")
    a("s_add_u32 s52, s52, s51")
    a("s_lshl_b32 s53, s52, 5")
    a(f"s_lshl_b32 s54, s{sHG}, 2")
    a("s_add_u32 s53, s53, s54")
    a("s_lshl_b32 s53, s53, 10")
    a(f"s_add_u32 s53, s53, {WS_PHIQA}")
    a("v_lshlrev_b32 v5, 4, v1")
    for hl in range(4):
        a(f"buffer_store_dwordx4 {vr(16+4*hl,4)}, v5, s[{sWS}:{sWS+3}], s53 offen offset:{hl*1024}")
    a("s_lshl_b32 s52, s52, 2")
    a(f"s_lshr_b32 s54, s{sHG}, 1")
    a("s_add_u32 s52, s52, s54")
    a("s_lshl_b32 s52, s52, 10")
    a(f"s_and_b32 s54, s{sHG}, 1")
    a("s_lshl_b32 s54, s54, 9")
    a("s_add_u32 s52, s52, s54")
    a(f"s_add_u32 s52, s52, {WS_PHIQA_LEFT}")
    a("v_lshlrev_b32 v6, 4, v8")
    a("v_lshl_add_u32 v6, v9, 3, v6")
    a(f"buffer_store_dwordx2 v[32:33], v6, s[{sWS}:{sWS+3}], s52 offen")
    a.branch("s_branch K1_END")

    a.label_nodrain("K1_POST_B")
    a.vmq = list(post_vmq)
    for j in range(5):
        a(f"v_lshl_or_b32 v{WPHI+j}, v{WPHI_HI+j}, 16, v{WPHI+j}")
    a(f"s_lshr_b32 s51, s{sWV}, 2")
    a("s_lshl_b32 s52, s51, 6")
    a("v_add_u32 v2, s52, v8")
    a(f"v_mul_u32_u24 v5, {PSTR}, v2")
    a(f"v_mul_u32_u24 v2, {TSTR}, v2")
    a("s_mul_i32 s52, s49, 36")
    a("v_lshl_add_u32 v2, v9, 4, v2")
    a("v_add_u32 v2, s52, v2")
    a("s_mul_i32 s52, s49, 80")
    a(f"s_add_u32 s52, s52, {P_OFF}")
    a("v_lshl_add_u32 v5, v9, 4, v5")
    a("v_add_u32 v5, s52, v5")
    D = 96
    E, N = 16, 28
    OP, ON = 40, 46
    def tile(part, g):
        base = g * 32 * TSTR + part * 144
        a(f"ds_read_b128 v[64:67], v2 offset:{base}")
        a(f"ds_read_b128 v[68:71], v2 offset:{base+32}")
        a(f"v_mfma_f32_32x32x16_bf16 {vr(D,16)}, {vr(WPHI,4)}, v[64:67], 0")
        a(f"v_mfma_f32_32x32x16_bf16 {vr(D,16)}, {vr(WPHI+4,4)}, v[68:71], {vr(D,16)}")
        for i in range(5):
            a(f"v_cvt_pk_bf16_f32 v{50+i}, v{D+2*i}, v{D+2*i+1}")
        for i in range(5):
            a(f"v_lshlrev_b32 v{D+2*i}, 16, v{50+i}")
            a(f"v_and_b32 v{D+2*i+1}, 0xffff0000, v{50+i}")
        a(f"v_max3_f32 v56, v{D}, v{D+1}, v{D+2}")
        a(f"v_min3_f32 v57, v{D}, v{D+1}, v{D+2}")
        a(f"v_max3_f32 v56, v56, v{D+3}, v{D+4}")
        a(f"v_min3_f32 v57, v57, v{D+3}, v{D+4}")
        a(f"v_max3_f32 v56, v56, v{D+5}, v{D+6}")
        a(f"v_min3_f32 v57, v57, v{D+5}, v{D+6}")
        a(f"v_max_f32 v56, v56, v{D+7}")
        a(f"v_min_f32 v57, v57, v{D+7}")
        a(f"s_mov_b64 exec, s[{sLO}:{sLO+1}]")
        a(f"v_max3_f32 v56, v56, v{D+8}, v{D+9}")
        a(f"v_min3_f32 v57, v57, v{D+8}, v{D+9}")
        a("s_mov_b64 exec, -1")
        a("v_mov_b32 v58, v56")
        a("v_mov_b32 v59, v57")
        a("v_permlane32_swap_b32 v56, v58")
        a("v_permlane32_swap_b32 v57, v59")
        a("v_max_f32 v56, v56, v58")
        a("v_min_f32 v57, v57, v59")
        a(f"v_mul_f32 v88, s{sNL}, v56")
        a(f"v_mul_f32 v90, s{sL}, v57")
        a("v_mov_b32 v89, v88")
        a("v_mov_b32 v91, v90")
        for i in range(5):
            a(f"v_pk_fma_f32 {vr(E+2*i,2)}, {vr(D+2*i,2)}, s[{sL}:{sL+1}], v[88:89]")
            a(f"v_pk_fma_f32 {vr(N+2*i,2)}, {vr(D+2*i,2)}, s[{sNL}:{sNL+1}], v[90:91]")
        for i in range(10):
            a(f"v_exp_f32 v{E+i}, v{E+i}")
            a(f"v_exp_f32 v{N+i}, v{N+i}")
        a(f"v_pk_add_f32 v[52:53], {vr(E,2)}, {vr(E+2,2)}")
        a(f"v_pk_add_f32 v[56:57], {vr(N,2)}, {vr(N+2,2)}")
        a(f"v_pk_add_f32 v[54:55], {vr(E+4,2)}, {vr(E+6,2)}")
        a(f"v_pk_add_f32 v[58:59], {vr(N+4,2)}, {vr(N+6,2)}")
        a("v_pk_add_f32 v[52:53], v[52:53], v[54:55]")
        a("v_pk_add_f32 v[56:57], v[56:57], v[58:59]")
        a("v_add_f32 v52, v52, v53")
        a("v_add_f32 v56, v56, v57")
        a(f"s_mov_b64 exec, s[{sLO}:{sLO+1}]")
        a(f"v_add_f32 v52, v52, v{E+8}")
        a(f"v_add_f32 v56, v56, v{N+8}")
        a(f"v_add_f32 v52, v52, v{E+9}")
        a(f"v_add_f32 v56, v56, v{N+9}")
        a("s_mov_b64 exec, -1")
        a("v_mov_b32 v53, v52")
        a("v_mov_b32 v57, v56")
        a("v_permlane32_swap_b32 v52, v53")
        a("v_permlane32_swap_b32 v56, v57")
        a("v_add_f32 v52, v52, v53")
        a("v_add_f32 v56, v56, v57")
        a("v_rcp_f32 v52, v52")
        a("v_rcp_f32 v56, v56")
        a("v_mov_b32 v53, v52")
        a("v_mov_b32 v57, v56")
        for i in range(5):
            a(f"v_pk_mul_f32 {vr(E+2*i,2)}, {vr(E+2*i,2)}, v[52:53]")
            a(f"v_pk_mul_f32 {vr(N+2*i,2)}, {vr(N+2*i,2)}, v[56:57]")
        for i in range(4):
            a(f"v_cvt_pk_bf16_f32 v{OP+i}, v{E+2*i}, v{E+2*i+1}")
            a(f"v_cvt_pk_bf16_f32 v{ON+i}, v{N+2*i}, v{N+2*i+1}")
        a(f"v_cvt_pk_bf16_f32 v44, v{E+8}, v{E+9}")
        a(f"v_cvt_pk_bf16_f32 v45, v{N+8}, v{N+9}")
    for g in range(2):
        tile(1, g)
        a(f"ds_write_b128 v5, {vr(OP,4)} offset:{g*32*PSTR}")
        a(f"ds_write_b128 v5, {vr(ON,4)} offset:{g*32*PSTR+32}")
        a(f"s_mov_b64 exec, s[{sLO}:{sLO+1}]")
        a(f"ds_write_b64 v5, v[44:45] offset:{g*32*PSTR+64}")
        a("s_mov_b64 exec, -1")
    a.barrier(lds=True)
    a(f"v_mul_u32_u24 v3, {TSTR}, v12")
    a("v_add_u32 v3, v3, v13")
    a("s_mul_i32 s52, s49, 36")
    a("s_sub_u32 s52, s52, s60")
    a("s_sub_u32 s52, s52, s60")
    a("v_add_u32 v3, s52, v3")
    a(f"v_mul_u32_u24 v4, {PSTR}, v12")
    a("v_add_u32 v4, v4, v13")
    a("s_mul_i32 s52, s49, 80")
    a("s_lshl_b32 s53, s51, 6")
    a("s_add_u32 s52, s52, s53")
    a(f"s_add_u32 s52, s52, {P_OFF}")
    a("v_add_u32 v4, s52, v4")
    kv_stream(a, 3, 288, 16 * TSTR, 4, 0, 16 * PSTR, D)
    a("v_mul_u32_u24 v4, 576, v9")
    a("v_lshl_add_u32 v4, v8, 2, v4")
    a("s_cmp_eq_u32 s51, 0")
    a("s_cselect_b32 s52, -1, 0xf")
    a(f"s_mov_b32 s{sMB}, s52")
    a(f"s_mov_b32 s{sMB+1}, s52")
    a(f"s_mov_b32 s{sML}, s52")
    a(f"s_mov_b32 s{sML+1}, 0")
    a(f"s_mov_b32 s{sMH}, 0")
    a(f"s_mov_b32 s{sMH+1}, s52")
    a("s_cmp_eq_u32 s60, 0")
    a(f"s_cselect_b32 s{sM01}, s52, 0")
    a(f"s_mov_b32 s{sM01+1}, s52")
    a(f"s_mul_i32 s52, s50, {KVB_HEAD}")
    a(f"s_add_u32 s52, s52, {WS_KVB}")
    a("s_lshl_b32 s53, s51, 7")
    a("s_add_u32 s53, s52, s53")
    a("s_mul_i32 s54, s60, 144")
    a("s_sub_u32 s52, s53, s54")
    poll_flag(a, 62, "K1_PB_POLL")
    kv_atomics(a, D, 4, 52, 53, 144, "K1_PB_AT")
    a("v_lshlrev_b32 v6, 4, v1")
    a("s_lshr_b32 s52, s49, 1")
    a("s_lshl_b32 s52, s52, 9")
    a("s_and_b32 s53, s49, 1")
    a("s_lshl_b32 s53, s53, 3")
    a("s_add_u32 s52, s52, s53")
    a("v_lshl_add_u32 v7, v8, 4, s52")
    for g in range(2):
        tile(0, g)
        a(f"s_lshl_b32 s52, s{sRB}, 2")
        a("s_lshl_b32 s53, s51, 1")
        a("s_add_u32 s52, s52, s53")
        a(f"s_add_u32 s52, s52, {g}")
        a("s_lshl_b32 s53, s52, 5")
        a("s_add_u32 s53, s53, s50")
        a("s_lshl_b32 s53, s53, 11")
        a(f"s_add_u32 s53, s53, {WS_PHIQB}")
        a(f"buffer_store_dwordx4 {vr(OP,4)}, v6, s[{sWS}:{sWS+3}], s53 offen")
        a(f"buffer_store_dwordx4 {vr(ON,4)}, v6, s[{sWS}:{sWS+3}], s53 offen offset:1024")
        a("s_lshl_b32 s52, s52, 3")
        a(f"s_add_u32 s52, s52, s{sHG}")
        a("s_lshl_b32 s52, s52, 10")
        a(f"s_add_u32 s52, s52, {WS_PHIQB_LEFT}")
        a(f"s_mov_b64 exec, s[{sLO}:{sLO+1}]")
        a(f"buffer_store_dwordx2 v[44:45], v7, s[{sWS}:{sWS+3}], s52 offen")
        a("s_mov_b64 exec, -1")
    a.label_nodrain("K1_END")
    a("s_endpgm")
    return a
```

```python
from gen_common import *

OSTR = 1168
O_BYTES = 64 * OSTR
XCH = O_BYTES
LDS_K2 = O_BYTES + 4 * 6144

sOUT, sWS = 8, 16
sRG, sNS, sWV, sR0 = 44, 45, 46, 47
sLO, sHM, sUP = 76, 78, 80
sEPS = 72

def vr(b, n=1):
    return f"v{b}" if n == 1 else f"v[{b}:{b+n-1}]"

KVA0 = lambda hl: 16 + 10 * hl
KVBR = lambda hl: 96 + 20 * hl
KVB0 = lambda hl: 96 + 12 * hl
PQA = lambda rgi, hl: 56 + (rgi * 5 + hl) * 4
PQB = lambda rgi, i: 176 + (rgi * 9 + i) * 4
DBS = [[176, 192], [16, 32]]
TMPS = [208, 48]
ACC = 16; BB = 64; AB = 176; APK = 144; ETMP = 224

def gen_k2(debug=None):
    a = Asm()
    a.raw(".globl k2_kernel\n.p2align 8\n.type k2_kernel,@function\nk2_kernel:")
    a("s_cmp_ge_u32 s2, 192")
    a("s_cbranch_scc1 K2_END")
    a("s_load_dwordx2 s[4:5], s[0:1], 64")
    a("s_load_dwordx2 s[6:7], s[0:1], 80")
    a("v_lshrrev_b32 v2, 6, v0")
    a(f"v_readfirstlane_b32 s{sWV}, v2")
    a("v_and_b32 v1, 63, v0")
    a("s_and_b32 s48, s2, 7")
    a("s_lshr_b32 s49, s2, 3")
    a("s_mul_i32 s50, s49, 43")
    a("s_lshr_b32 s50, s50, 8")
    a("s_mul_i32 s51, s50, 6")
    a(f"s_sub_u32 s{sNS}, s49, s51")
    a("s_lshl_b32 s50, s50, 3")
    a("s_add_u32 s50, s50, s48")
    a(f"s_lshl_b32 s{sRG}, s50, 1")
    a(f"s_lshl_b32 s{sR0}, s50, 6")
    a(f"s_mov_b32 s{sLO}, -1")
    a(f"s_mov_b32 s{sLO+1}, 0")
    a(f"s_mov_b32 s{sUP}, 0")
    a(f"s_mov_b32 s{sUP+1}, -1")
    a(f"s_and_b32 s51, s{sWV}, 1")
    a("s_cmp_eq_u32 s51, 0")
    a(f"s_cselect_b32 s{sHM}, -1, 0")
    a(f"s_cselect_b32 s{sHM+1}, 0, -1")
    a(f"s_mov_b32 s{sEPS}, 0x358637bd")
    a.waitcnt(lgkm=0)
    srd(a, sOUT, 4, 5, 2359296)
    srd(a, sWS, 6, 7, 268435456)
    a("v_and_b32 v9, 31, v1")
    a("v_lshrrev_b32 v10, 5, v1")
    a("v_mov_b32 v11, 0x40000000")
    a("v_cmp_gt_u32 vcc, 19, v9")
    a("v_mul_u32_u24 v2, 80, v9")
    a("v_add_u32 v3, 64, v2")
    a("v_lshl_add_u32 v2, v10, 5, v2")
    a("v_cndmask_b32 v2, v11, v2, vcc")
    a("v_cndmask_b32 v3, v11, v3, vcc")
    a("v_mul_u32_u24 v4, 144, v9")
    a("v_add_u32 v5, 128, v4")
    a("v_lshl_add_u32 v4, v10, 5, v4")
    a("v_cndmask_b32 v4, v11, v4, vcc")
    a("v_cndmask_b32 v5, v11, v5, vcc")
    a("v_lshlrev_b32 v6, 4, v1")
    a(f"v_mul_u32_u24 v7, {OSTR}, v9")
    a("v_lshl_add_u32 v7, v10, 3, v7")
    a(f"s_mul_i32 s51, s{sWV}, 144")
    a("v_add_u32 v7, s51, v7")
    a("v_and_b32 v12, 15, v1")
    a("v_lshrrev_b32 v13, 4, v1")
    a(f"v_mul_u32_u24 v8, {OSTR}, v12")
    a("v_lshl_add_u32 v8, v13, 4, v8")
    a(f"s_and_b32 s51, s{sWV}, 1")
    a(f"s_mul_i32 s52, s51, {32*OSTR}")
    a("v_add_u32 v14, s52, v8")
    a(f"s_sub_u32 s52, {32*OSTR}, s52")
    a("v_add_u32 v15, s52, v8")

    def kv_loads_A():
        for hl in range(4):
            R = KVA0(hl)
            a(f"s_lshl_b32 s52, s{sWV}, 2")
            a(f"s_add_u32 s52, s52, {hl}")
            a(f"s_mul_i32 s52, s52, {KVA_HEAD}")
            a(f"s_add_u32 s52, s52, {WS_KVA}")
            a(f"buffer_load_dwordx4 {vr(R,4)}, v2, s[{sWS}:{sWS+3}], s52 offen")
            a(f"buffer_load_dwordx4 {vr(R+4,4)}, v2, s[{sWS}:{sWS+3}], s52 offen offset:16")
            a(f"buffer_load_dwordx2 {vr(R+8,2)}, v3, s[{sWS}:{sWS+3}], s52 offen")
    def kv_loads_B():
        for hl in range(4):
            R = KVBR(hl)
            a(f"s_lshl_b32 s52, s{sWV}, 2")
            a(f"s_add_u32 s52, s52, {hl}")
            a(f"s_mul_i32 s52, s52, {KVB_HEAD}")
            a(f"s_add_u32 s52, s52, {WS_KVB}")
            a(f"buffer_load_dwordx4 {vr(R,4)}, v4, s[{sWS}:{sWS+3}], s52 offen")
            a(f"buffer_load_dwordx4 {vr(R+4,4)}, v4, s[{sWS}:{sWS+3}], s52 offen offset:16")
            a(f"buffer_load_dwordx4 {vr(R+8,4)}, v4, s[{sWS}:{sWS+3}], s52 offen offset:64")
            a(f"buffer_load_dwordx4 {vr(R+12,4)}, v4, s[{sWS}:{sWS+3}], s52 offen offset:80")
            a(f"buffer_load_dwordx4 {vr(R+16,4)}, v5, s[{sWS}:{sWS+3}], s52 offen")
    def pq_loads_A():
        for rgi in range(2):
            a(f"s_add_u32 s52, s{sRG}, {rgi}")
            a("s_lshl_b32 s53, s52, 5")
            a(f"s_lshl_b32 s54, s{sWV}, 2")
            a("s_add_u32 s53, s53, s54")
            a("s_lshl_b32 s53, s53, 10")
            a(f"s_add_u32 s53, s53, {WS_PHIQA}")
            for hl in range(4):
                a(f"buffer_load_dwordx4 {vr(PQA(rgi,hl),4)}, v6, s[{sWS}:{sWS+3}], s53 offen offset:{hl*1024}")
            a("s_lshl_b32 s53, s52, 2")
            a(f"s_lshr_b32 s54, s{sWV}, 1")
            a("s_add_u32 s53, s53, s54")
            a("s_lshl_b32 s53, s53, 10")
            a(f"s_add_u32 s53, s53, {WS_PHIQA_LEFT}")
            a(f"buffer_load_dwordx4 {vr(PQA(rgi,4),4)}, v6, s[{sWS}:{sWS+3}], s53 offen")
    def pq_loads_B():
        for rgi in range(2):
            a(f"s_add_u32 s52, s{sRG}, {rgi}")
            a("s_lshl_b32 s53, s52, 5")
            a(f"s_lshl_b32 s54, s{sWV}, 2")
            a("s_add_u32 s53, s53, s54")
            a("s_lshl_b32 s53, s53, 11")
            a(f"s_add_u32 s53, s53, {WS_PHIQB}")
            for i in range(8):
                if i == 4:
                    a("s_add_u32 s53, s53, 4096")
                a(f"buffer_load_dwordx4 {vr(PQB(rgi,i),4)}, v6, s[{sWS}:{sWS+3}], s53 offen offset:{(i%4)*1024}")
            a("s_lshl_b32 s53, s52, 3")
            a(f"s_add_u32 s53, s53, s{sWV}")
            a("s_lshl_b32 s53, s53, 10")
            a(f"s_add_u32 s53, s53, {WS_PHIQB_LEFT}")
            a(f"buffer_load_dwordx4 {vr(PQB(rgi,8),4)}, v6, s[{sWS}:{sWS+3}], s53 offen")
    kv_loads_A()
    pq_loads_A()
    kv_loads_B()

    def norm(D, rgi, hl, T):
        a(f"v_cvt_pk_bf16_f32 v{T}, v{D+10}, v{D+10}")
        a(f"v_lshlrev_b32 v{T}, 16, v{T}")
        a(f"v_add_f32 v{T}, s{sEPS}, v{T}")
        a(f"v_cvt_pk_bf16_f32 v{T}, v{T}, v{T}")
        a(f"v_lshlrev_b32 v{T}, 16, v{T}")
        a(f"v_mov_b32 v{T+1}, v{T}")
        a(f"v_permlane32_swap_b32 v{T}, v{T+1}")
        a(f"v_rcp_f32 v{T}, v{T}")
        for i in range(5):
            a(f"v_cvt_pk_bf16_f32 v{T+2+i}, v{D+2*i}, v{D+2*i+1}")
        a(f"v_mov_b32 v{T+1}, v{T}")
        for i in range(5):
            a(f"v_lshlrev_b32 v{D+2*i}, 16, v{T+2+i}")
            a(f"v_and_b32 v{D+2*i+1}, 0xffff0000, v{T+2+i}")
        for i in range(5):
            a(f"v_pk_mul_f32 {vr(D+2*i,2)}, {vr(D+2*i,2)}, {vr(T,2)}")
        for i in range(5):
            a(f"v_cvt_pk_bf16_f32 v{T+2+i}, v{D+2*i}, v{D+2*i+1}")
        off = rgi * 32 * OSTR + hl * 36
        a(f"ds_write_b64 v7, {vr(T+2,2)} offset:{off}")
        a(f"ds_write_b64 v7, {vr(T+4,2)} offset:{off+16}")
        a(f"s_mov_b64 exec, s[{sLO}:{sLO+1}]")
        a(f"ds_write_b32 v7, v{T+6} offset:{off+32}")
        a("s_mov_b64 exec, -1")
    def convert_kvb():
        for hl in range(4):
            R = KVBR(hl); Dd = KVB0(hl)
            for i in range(4):
                a(f"v_cvt_pk_bf16_f32 v{Dd+i}, v{R+2*i}, v{R+2*i+1}")
            for i in range(4):
                a(f"v_cvt_pk_bf16_f32 v{Dd+4+i}, v{R+8+2*i}, v{R+9+2*i}")
            a(f"v_cvt_pk_bf16_f32 v{R+16}, v{R+16}, v{R+17}")
            a(f"v_cvt_pk_bf16_f32 v{R+17}, v{R+18}, v{R+19}")
            msk = sLO if hl < 2 else sUP
            for i in range(4):
                if i // 2 == (hl & 1):
                    a(f"v_cndmask_b32 v{Dd+8+i}, 0, v{R+16+(i&1)}, s[{msk}:{msk+1}]")
                else:
                    a(f"v_mov_b32 v{Dd+8+i}, 0")
    def phase1(br):
        DB = DBS[br]; TMP = TMPS[br]
        if br == 0:
            for hl in range(4):
                R = KVA0(hl)
                for i in range(4):
                    a(f"v_cvt_pk_bf16_f32 v{R+i}, v{R+2*i}, v{R+2*i+1}")
                a(f"v_cvt_pk_bf16_f32 v{R+8}, v{R+8}, v{R+9}")
                for i in range(4):
                    if i == hl:
                        a(f"v_cndmask_b32 v{R+4+i}, 0, v{R+8}, s[{sHM}:{sHM+1}]")
                    else:
                        a(f"v_mov_b32 v{R+4+i}, 0")
        tiles = [(rgi, hl) for rgi in range(2) for hl in range(4)]
        def mf(t):
            rgi, hl = tiles[t]
            D = DB[t % 2]
            if br == 0:
                R = KVA0(hl)
                a(f"v_mfma_f32_32x32x16_bf16 {vr(D,16)}, {vr(R,4)}, {vr(PQA(rgi,hl),4)}, 0")
                a(f"v_mfma_f32_32x32x16_bf16 {vr(D,16)}, {vr(R+4,4)}, {vr(PQA(rgi,4),4)}, {vr(D,16)}")
            else:
                R = KVB0(hl)
                a(f"v_mfma_f32_32x32x16_bf16 {vr(D,16)}, {vr(R,4)}, {vr(PQB(rgi,2*hl),4)}, 0")
                a(f"v_mfma_f32_32x32x16_bf16 {vr(D,16)}, {vr(R+4,4)}, {vr(PQB(rgi,2*hl+1),4)}, {vr(D,16)}")
                a(f"v_mfma_f32_32x32x16_bf16 {vr(D,16)}, {vr(R+8,4)}, {vr(PQB(rgi,8),4)}, {vr(D,16)}")
        mf(0)
        for t in range(8):
            if t + 1 < 8:
                mf(t + 1)
            norm(DB[t % 2], *tiles[t], TMP)

    def a_loads(br, k):
        for ct in range(3):
            a(f"s_add_u32 s56, s55, {ct*18432 + k*1024}")
            a(f"buffer_load_dwordx4 {vr(AB+(k%4)*12+ct*4,4)}, v6, s[{sWS}:{sWS+3}], s56 offen")
    def gemm_pre(br):
        a(f"s_lshr_b32 s52, s{sWV}, 1")
        a("s_mul_i32 s52, s52, 3")
        a(f"s_mul_i32 s53, s{sNS}, 6")
        a("s_add_u32 s52, s52, s53")
        a(f"s_add_u32 s52, s52, {br*36}")
        a("s_mul_i32 s55, s52, 18432")
        a(f"s_and_b32 s53, s{sWV}, 1")
        a("s_mul_i32 s54, s53, 9216")
        a("s_add_u32 s55, s55, s54")
        a(f"s_add_u32 s55, s55, {WS_WOF}")
        a("s_mul_i32 s57, s53, 576")
        for k in range(3):
            a_loads(br, k)
    def b_reads(k):
        for j in range(4):
            a(f"ds_read_b128 {vr(BB+(k%2)*16+j*4,4)}, v{14 if j < 2 else 15} offset:{(j&1)*16*OSTR + k*64}")
    def gemm(br):
        b_reads(0)
        for k in range(9):
            if k + 3 < 9:
                a_loads(br, k + 3)
            if k + 1 < 9:
                b_reads(k + 1)
            for j in range(4):
                for ct in range(3):
                    A0 = ACC + (j * 3 + ct) * 4
                    a(f"v_mfma_f32_16x16x32_bf16 {vr(A0,4)}, {vr(AB+(k%4)*12+ct*4,4)}, {vr(BB+(k%2)*16+j*4,4)}, {'0' if k == 0 else vr(A0,4)}")
    def exchange():
        a(f"s_mul_i32 s52, s{sWV}, 6144")
        a(f"s_add_u32 s52, s52, {XCH}")
        a("v_add_u32 v9, s52, v6")
        for i in range(6):
            a(f"ds_write_b128 v9, {vr(ACC+24+4*i,4)} offset:{i*1024}")
        a.barrier(lds=True)
        a(f"s_xor_b32 s52, s{sWV}, 1")
        a("s_mul_i32 s52, s52, 6144")
        a(f"s_add_u32 s52, s52, {XCH}")
        a("v_add_u32 v9, s52, v6")
        for i in range(6):
            a(f"ds_read_b128 {vr(BB+4*i,4)}, v9 offset:{i*1024}")
        for i in range(24):
            a(f"v_add_f32 v{ACC+i}, v{ACC+i}, v{BB+i}")

    phase1(0)
    convert_kvb()
    a(f"s_cmp_ge_u32 s{sWV}, 4")
    a.branch_nodrain("s_cbranch_scc1 K2_IDLE_A")
    q0 = list(a.vmq)
    a(f"s_and_b32 s53, s{sWV}, 1")
    a("s_mul_i32 s53, s53, 576")
    a("v_add_u32 v14, s53, v14")
    a("v_add_u32 v15, s53, v15")
    gemm_pre(0)
    a.barrier(lds=True)
    gemm(0)
    pq_loads_B()
    exchange()
    for i in range(12):
        a(f"v_cvt_pk_bf16_f32 v{APK+i}, v{ACC+2*i}, v{ACC+2*i+1}")
    a.branch_nodrain("s_branch K2_JOIN_B")
    q1 = list(a.vmq)
    a.label_nodrain("K2_IDLE_A")
    a.vmq = list(q0)
    pq_loads_B()
    a.barrier(lds=True)
    a.barrier(lds=True)
    a.label_nodrain("K2_JOIN_B")
    assert len(a.vmq) == len(q1) == 18, (len(a.vmq), len(q1))
    phase1(1)
    a(f"s_cmp_ge_u32 s{sWV}, 4")
    a.branch_nodrain("s_cbranch_scc1 K2_IDLE_B")
    q0 = list(a.vmq)
    gemm_pre(1)
    a.barrier(lds=True)
    gemm(1)
    a(f"s_and_b32 s53, s{sWV}, 1")
    a("s_lshl_b32 s53, s53, 5")
    a(f"s_add_u32 s53, s53, s{sR0}")
    a("s_lshl_b32 s54, s53, 2")
    a(f"s_add_u32 s54, s54, {WS_G}")
    a("v_lshlrev_b32 v10, 2, v12")
    a(f"buffer_load_dword v{ETMP}, v10, s[{sWS}:{sWS+3}], s54 offen")
    a(f"buffer_load_dword v{ETMP+2}, v10, s[{sWS}:{sWS+3}], s54 offen offset:64")
    exchange()
    G = ETMP
    for sl in range(2):
        g = G + 2 * sl
        og = G + 4 + 2 * sl
        a(f"v_mov_b32 v{g+1}, v{g}")
        a(f"v_sub_f32 v{og}, 1.0, v{g}")
        a(f"v_cvt_pk_bf16_f32 v{og}, v{og}, v{og}")
        a(f"v_lshlrev_b32 v{og}, 16, v{og}")
        a(f"v_mov_b32 v{og+1}, v{og}")
    X = ETMP + 8
    a("v_mul_u32_u24 v9, 1152, v12")
    a("v_lshl_add_u32 v9, v13, 3, v9")
    a("s_mul_i32 s54, s53, 1152")
    a(f"s_mul_i32 s52, s{sNS}, 192")
    a("s_add_u32 s54, s54, s52")
    a(f"s_lshr_b32 s52, s{sWV}, 1")
    a("s_mul_i32 s52, s52, 96")
    a("s_add_u32 s54, s54, s52")
    for sl in range(2):
        g = G + 2 * sl; og = G + 4 + 2 * sl
        if sl == 1:
            a(f"s_add_u32 s54, s54, {16*1152}")
        for ct in range(3):
            A0 = ACC + (sl * 3 + ct) * 4
            P0 = APK + (sl * 3 + ct) * 2
            for p in range(2):
                a(f"v_lshlrev_b32 v{X}, 16, v{P0+p}")
                a(f"v_and_b32 v{X+1}, 0xffff0000, v{P0+p}")
                a(f"v_cvt_pk_bf16_f32 v{X+4}, v{A0+2*p}, v{A0+2*p+1}")
                a(f"v_pk_mul_f32 {vr(X,2)}, {vr(X,2)}, {vr(g,2)}")
                a(f"v_lshlrev_b32 v{X+2}, 16, v{X+4}")
                a(f"v_and_b32 v{X+3}, 0xffff0000, v{X+4}")
                a(f"v_cvt_pk_bf16_f32 v{X+4}, v{X}, v{X+1}")
                a(f"v_pk_mul_f32 {vr(X+2,2)}, {vr(X+2,2)}, {vr(og,2)}")
                a(f"v_lshlrev_b32 v{X}, 16, v{X+4}")
                a(f"v_and_b32 v{X+1}, 0xffff0000, v{X+4}")
                a(f"v_cvt_pk_bf16_f32 v{X+4}, v{X+2}, v{X+3}")
                a(f"v_lshlrev_b32 v{X+2}, 16, v{X+4}")
                a(f"v_and_b32 v{X+3}, 0xffff0000, v{X+4}")
                a(f"v_pk_add_f32 {vr(X,2)}, {vr(X,2)}, {vr(X+2,2)}")
                a(f"v_cvt_pk_bf16_f32 v{A0+p}, v{X}, v{X+1}")
            a(f"buffer_store_dwordx2 {vr(A0,2)}, v9, s[{sOUT}:{sOUT+3}], s54 offen offset:{ct*32}")
    a.branch_nodrain("s_branch K2_END")
    a.label_nodrain("K2_IDLE_B")
    a.vmq = list(q0)
    a.barrier(lds=True)
    a.barrier(lds=True)
    a.label_nodrain("K2_END")
    a("s_endpgm")
    return a
```

```python
import sys
from gen_common import *
from gen_k1 import gen_k1, LDS_K1
from gen_k2 import gen_k2, LDS_K2

def build(debug=None, only_k1=False):
    L = []
    L.append(f"; @launch kernel=k1_kernel grid=(256,1,1) block=(512,1,1) lds={LDS_K1}")
    if not only_k1:
        L.append(f"; @launch kernel=k2_kernel grid=(192,1,1) block=(512,1,1) lds={LDS_K2}")
    L.append('.amdgcn_target "amdgcn-amd-amdhsa--gfx950"')
    L.append(".text")
    a1 = gen_k1(debug)
    L.append(a1.text())
    if not only_k1:
        a2 = gen_k2(debug)
        L.append(a2.text())
    L.append('.section .rodata,"a"')
    L.append(kdesc("k1_kernel", 256))
    if not only_k1:
        L.append(kdesc("k2_kernel", 256))
        print("k2 instrs", a2.ninstr, "pad", a2.npad, file=sys.stderr)
    print("k1 instrs", a1.ninstr, "pad", a1.npad, file=sys.stderr)
    return "\n".join(L)

if __name__ == "__main__":
    out = sys.argv[1]
    debug = sys.argv[2] if len(sys.argv) > 2 and sys.argv[2] != "-" else None
    only = len(sys.argv) > 3 and sys.argv[3] == "k1"
    open(out, "w").write(build(debug, only))
```

```python
from asmgen import Asm

S = 2048; D = 576; H = 32; DH = 18
WS_PHIQA      = 0x000000
WS_PHIQA_LEFT = 0x200000
WS_PHIQB      = 0x240000
WS_PHIQB_LEFT = 0x640000
WS_KVA        = 0x6C0000
WS_KVB        = 0x6D0000
WS_G          = 0x6F0000
WS_WOF        = 0x700000
WS_DBG        = 0x1000000
KVA_HEAD = 1536
KVB_HEAD = 2816
LOG2E = 0x3fb8aa3b

def kdesc(name, vgpr, sgpr=102):
    acc = (vgpr + 3) // 4 * 4
    return f""".p2align 6
.amdhsa_kernel {name}
  .amdhsa_next_free_vgpr {vgpr}
  .amdhsa_next_free_sgpr {sgpr}
  .amdhsa_accum_offset {acc}
  .amdhsa_group_segment_fixed_size 0
  .amdhsa_kernarg_size 88
  .amdhsa_user_sgpr_count 2
  .amdhsa_user_sgpr_kernarg_segment_ptr 1
  .amdhsa_system_sgpr_workgroup_id_x 1
.end_amdhsa_kernel
"""

def srd(a, d, lo, hi, nrec):
    a(f"s_mov_b32 s{d}, s{lo}")
    a(f"s_mov_b32 s{d+1}, s{hi}")
    a(f"s_mov_b32 s{d+2}, {nrec}")
    a(f"s_mov_b32 s{d+3}, 0x00020000")

PROF_V = 255
def stamp(a, idx, on=True):
    if not on:
        return
    a("s_memrealtime s[98:99]")
    a.waitcnt(lgkm=0)
    a(f"v_writelane_b32 v{PROF_V}, s98, {idx}")
def stamp_flush(a, srd_ws, base, nwg_stride, on=True):
    pass
```

```python
from gen_common import *

STAGE = 47104
XB = 16384
WSTR = 480
TSTR = 464
PSTR = 400
P_OFF = 128 * TSTR
LDS_K1 = 3 * STAGE
NCH = 9

sX, sW, sWS, sDBG, sWPHI, sGW = 8, 12, 16, 20, 36, 40
sWOA, sWOB = 88, 92
sRB, sCG, sBR, sHG, sWV = 44, 45, 46, 47, 48
sL, sEPS, sONEM, sNL = 70, 72, 74, 84
sMB, sML, sMH, sM01 = 76, 78, 80, 82
sLO = 86
WPHI = 226
WPHI_HI = 234

def vr(b, n=1):
    return f"v{b}" if n == 1 else f"v[{b}:{b+n-1}]"

def phi_multi(a, regs, tb):
    def seq(x, t):
        t0, t1, t2, t3, t4, t5 = range(t, t + 6)
        return [
            f"v_pk_max_i16 v{t4}, v{x}, 0",
            f"v_pk_min_i16 v{t5}, v{x}, 0",
            f"v_lshlrev_b32 v{t0}, 16, v{t5}",
            f"v_and_b32 v{t1}, 0xffff0000, v{t5}",
            f"v_pk_mul_f32 v[{t0}:{t1}], v[{t0}:{t1}], s[{sL}:{sL+1}]",
            f"v_exp_f32 v{t0}, v{t0}",
            f"v_exp_f32 v{t1}, v{t1}",
            f"v_lshlrev_b32 v{t2}, 16, v{t4}",
            f"v_and_b32 v{t3}, 0xffff0000, v{t4}",
            f"v_pk_add_f32 v[{t0}:{t1}], v[{t0}:{t1}], v[{t2}:{t3}]",
            f"v_cvt_pk_bf16_f32 v{t4}, v{t0}, v{t1}",
            f"v_lshlrev_b32 v{t0}, 16, v{t4}",
            f"v_and_b32 v{t1}, 0xffff0000, v{t4}",
            f"v_pk_add_f32 v[{t0}:{t1}], v[{t0}:{t1}], s[{sEPS}:{sEPS+1}]",
            f"v_cvt_pk_bf16_f32 v{x}, v{t0}, v{t1}",
        ]
    for i in range(0, len(regs), 2):
        s1 = seq(regs[i], tb)
        s2 = seq(regs[i + 1], tb + 6) if i + 1 < len(regs) else []
        for k in range(len(s1)):
            a(s1[k])
            if s2:
                a(s2[k])

def kv_atomics(a, D, voff, sbase, sbase_z, rowb, label):
    def at(r, imm):
        a(f"buffer_atomic_add_f32 v{D+r}, v{voff}, s[{sWS}:{sWS+3}], s{sbase} offen offset:{imm}")
    a(f"s_mov_b64 exec, s[{sM01}:{sM01+1}]")
    for r in (0, 1):
        at(r, r * rowb)
    a(f"s_mov_b64 exec, s[{sMB}:{sMB+1}]")
    for r in range(2, 8):
        at(r, ((r & 3) + 8 * (r >> 2)) * rowb)
    a(f"s_mov_b64 exec, s[{sML}:{sML+1}]")
    for r in (8, 9):
        at(r, ((r & 3) + 8 * (r >> 2)) * rowb)
    a("s_cmp_eq_u32 s60, 0")
    a.branch_nodrain(f"s_cbranch_scc1 {label}")
    for r in (10, 11):
        at(r, ((r & 3) + 8 * (r >> 2)) * rowb)
    a.label_nodrain(label)
    a(f"s_mov_b64 exec, s[{sMH}:{sMH+1}]")
    a(f"buffer_atomic_add_f32 v{D+14}, v{voff}, s[{sWS}:{sWS+3}], s{sbase_z} offen offset:{14*rowb}")
    a("s_mov_b64 exec, -1")

def poll_flag(a, vreg, label):
    a(f"v_readfirstlane_b32 s62, v{vreg}")
    a.label(label + "_LOOP")
    a("s_cmp_lg_u32 s62, 0")
    a.branch(f"s_cbranch_scc1 {label}_OK")
    a(f"buffer_load_dword v{vreg}, off, s[{sDBG}:{sDBG+3}], s61 sc0 sc1")
    a(f"v_readfirstlane_b32 s62, v{vreg}")
    a.branch(f"s_branch {label}_LOOP")
    a.label(label + "_OK")

def kv_stream(a, vA, offA, gA, vB, offB, gB, D):
    AB, BB = 64, 80
    def reads(g):
        b = g % 2
        return [f"ds_read_b64_tr_b16 {vr(AB+b*4,2)}, v{vA} offset:{offA+g*gA}",
                f"ds_read_b64_tr_b16 {vr(AB+b*4+2,2)}, v{vA} offset:{offA+g*gA+gA//4}",
                f"ds_read_b64_tr_b16 {vr(BB+b*4,2)}, v{vB} offset:{offB+g*gB}",
                f"ds_read_b64_tr_b16 {vr(BB+b*4+2,2)}, v{vB} offset:{offB+g*gB+gB//4}"]
    for r in reads(0):
        a(r)
    for g in range(8):
        b = g % 2
        if g + 1 < 8:
            for r in reads(g + 1):
                a(r)
        for j in range(4):
            a(f"v_cndmask_b32 v{AB+b*4+j}, v{AB+b*4+j}, v63, s[{sONEM}:{sONEM+1}]")
        a(f"v_mfma_f32_32x32x16_bf16 {vr(D,16)}, {vr(AB+b*4,4)}, {vr(BB+b*4,4)}, {'0' if g == 0 else vr(D,16)}")

def gen_k1(debug=None):
    a = Asm()
    PROF = (debug == "prof")
    a.raw(".globl k1_kernel\n.p2align 8\n.type k1_kernel,@function\nk1_kernel:")
    a("s_cmp_ge_u32 s2, 256")
    a("s_cbranch_scc1 K1_EXIT")
    stamp(a, 0, PROF)
    a("s_load_dwordx2 s[4:5], s[0:1], 0")
    a("s_load_dwordx2 s[6:7], s[0:1], 8")
    a("s_load_dwordx2 s[24:25], s[0:1], 32")
    a("s_load_dwordx2 s[26:27], s[0:1], 40")
    a("s_load_dwordx2 s[28:29], s[0:1], 56")
    a("s_load_dwordx2 s[30:31], s[0:1], 72")
    a("s_load_dwordx2 s[32:33], s[0:1], 80")
    a("s_load_dwordx2 s[64:65], s[0:1], 16")
    a("s_load_dwordx2 s[66:67], s[0:1], 48")
    a("s_and_b32 s49, s2, 7")
    a("s_lshr_b32 s50, s2, 3")
    a("s_lshr_b32 s51, s50, 2")
    a("s_lshl_b32 s51, s51, 1")
    a("s_and_b32 s52, s49, 1")
    a(f"s_or_b32 s{sRB}, s51, s52")
    a("s_lshr_b32 s51, s49, 1")
    a("s_lshl_b32 s51, s51, 2")
    a("s_and_b32 s52, s50, 3")
    a(f"s_or_b32 s{sCG}, s51, s52")
    a(f"s_lshr_b32 s{sBR}, s{sCG}, 3")
    a(f"s_and_b32 s{sHG}, s{sCG}, 7")
    a("v_lshrrev_b32 v2, 6, v0")
    a(f"v_readfirstlane_b32 s{sWV}, v2")
    a("v_and_b32 v1, 63, v0")
    a(f"s_mov_b32 s{sL}, {LOG2E}")
    a(f"s_mov_b32 s{sL+1}, {LOG2E}")
    a(f"s_mov_b32 s{sEPS}, 0x358637bd")
    a(f"s_mov_b32 s{sEPS+1}, 0x358637bd")
    a(f"s_mov_b32 s{sONEM}, 0x40000000")
    a(f"s_mov_b32 s{sONEM+1}, 0x40000000")
    a(f"s_mov_b32 s{sNL}, {LOG2E | 0x80000000}")
    a(f"s_mov_b32 s{sNL+1}, {LOG2E | 0x80000000}")
    a(f"s_mov_b32 s{sLO}, -1")
    a(f"s_mov_b32 s{sLO+1}, 0")
    a.waitcnt(lgkm=0)
    srd(a, sX, 4, 5, 2359296)
    a(f"s_cmp_eq_u32 s{sBR}, 0")
    a("s_cselect_b32 s3, s6, s24")
    a("s_cselect_b32 s34, s7, s25")
    srd(a, sW, 3, 34, 1990656)
    srd(a, sWS, 32, 33, 268435456)
    srd(a, sDBG, 30, 31, 256)
    srd(a, sWPHI, 26, 27, 20736)
    srd(a, sGW, 28, 29, 1152)
    srd(a, sWOA, 64, 65, 663552)
    srd(a, sWOB, 66, 67, 663552)
    a(f"s_and_b32 s49, s{sWV}, 3")
    a(f"s_lshl_b32 s50, s{sHG}, 2")
    a("s_add_u32 s49, s49, s50")
    a("s_mul_i32 s49, s49, 648")
    a("v_and_b32 v3, 31, v1")
    a("v_lshrrev_b32 v4, 5, v1")
    a("v_mul_u32_u24 v5, 288, v4")
    a("v_lshl_add_u32 v5, v3, 1, v5")
    a("v_mov_b32 v6, 0x40000000")
    a("v_cmp_gt_u32 vcc, 18, v3")
    a("v_cndmask_b32 v5, v6, v5, vcc")
    a("v_lshlrev_b32 v7, 1, v3")
    a("v_add_u32 v7, 576, v7")
    a("v_cmp_eq_u32 s[50:51], 0, v4")
    a("s_and_b64 vcc, vcc, s[50:51]")
    a("v_cndmask_b32 v7, v6, v7, vcc")
    for j in range(8):
        a(f"buffer_load_ushort v{(WPHI if j % 2 == 0 else WPHI_HI)+j//2}, v5, s[{sWPHI}:{sWPHI+3}], s49 offen offset:{j*36}")
    a(f"buffer_load_ushort v{WPHI+4}, v7, s[{sWPHI}:{sWPHI+3}], s49 offen")
    a(f"buffer_load_ushort v{WPHI_HI+4}, v7, s[{sWPHI}:{sWPHI+3}], s49 offen offset:36")
    for j in range(5, 8):
        a(f"v_mov_b32 v{WPHI+j}, 0")
    stamp(a, 1, PROF)
    a(f"s_cmp_ge_u32 s{sWV}, 4")
    a.branch_nodrain("s_cbranch_scc1 K1_NONCOMPUTE")
    pre_vmq = list(a.vmq)

    ACC = 16; XBUF = 128; WBUF = 160; AX = 216; AW = 222; AT = 225
    acc = lambda rt, ct: ACC + (ct * 4 + rt) * 4
    a(f"s_lshr_b32 s49, s{sWV}, 1")
    a(f"s_and_b32 s50, s{sWV}, 1")
    a("v_and_b32 v3, 15, v1")
    a("v_lshrrev_b32 v4, 4, v1")
    a("v_and_b32 v5, 7, v3")
    a("v_xor_b32 v5, v4, v5")
    a("v_lshlrev_b32 v5, 4, v5")
    a("v_lshl_add_u32 v5, v3, 7, v5")
    a("s_lshl_b32 s51, s49, 13")
    a("v_add_u32 v5, s51, v5")
    for st in range(3):
        a(f"v_add_u32 v{AX+st*2}, {st*STAGE}, v5")
        a(f"v_xor_b32 v{AX+st*2+1}, 64, v{AX+st*2}")
    a("v_lshrrev_b32 v5, 1, v4")
    a("v_lshlrev_b32 v5, 4, v5")
    a("v_and_b32 v6, 1, v4")
    a("v_lshl_add_u32 v5, v6, 2, v5")
    a("v_lshrrev_b32 v6, 2, v3")
    a("v_add_u32 v5, v5, v6")
    a(f"v_mul_u32_u24 v5, {WSTR}, v5")
    a("v_and_b32 v6, 3, v3")
    a("v_lshl_add_u32 v5, v6, 3, v5")
    a("s_mul_i32 s51, s50, 224")
    a(f"s_add_u32 s51, s51, {XB}")
    a("v_add_u32 v5, s51, v5")
    for st in range(3):
        a(f"v_add_u32 v{AW+st}, {st*STAGE}, v5")
    a("s_lshl_b32 s51, s49, 6")
    a("v_add_u32 v5, s51, v3")
    a(f"v_mul_u32_u24 v5, {TSTR}, v5")
    a("s_mul_i32 s51, s50, 224")
    a("v_lshl_add_u32 v6, v4, 3, s51")
    a(f"v_add_u32 v{AT}, v5, v6")

    def reads(i):
        c, ks, b, st = i // 2, i % 2, i % 2, (i // 2) % 3
        L = []
        for rt in range(4):
            L.append(f"ds_read_b128 {vr(XBUF+b*16+rt*4,4)}, v{AX+st*2+ks} offset:{rt*2048}")
        for ct in range(7):
            for hf in range(2):
                L.append(f"ds_read_b64_tr_b16 {vr(WBUF+b*28+ct*4+hf*2,2)}, v{AW+st} offset:{ks*32*WSTR+hf*8*WSTR+ct*32}")
        order = [L[0], L[4], L[5], L[1], L[2], L[3]] + L[6:]
        return order

    if debug == "touch":
        a("v_and_b32 v5, 15, v1")
        a(f"s_lshl_b32 s51, s{sBR}, 6")
        a(f"s_lshl_b32 s52, s{sWV}, 4")
        a("s_add_u32 s51, s51, s52")
        a("v_add_u32 v5, s51, v5")
        a("v_mul_u32_u24 v5, 1152, v5")
        a("v_lshlrev_b32 v6, 7, v4")
        a("v_add_u32 v5, v5, v6")
        a(f"s_mul_i32 s51, s{sRB}, {128*1152}")
        a(f"buffer_load_dword v240, v5, s[{sX}:{sX+3}], s51 offen offset:256")
        a("v_cmp_gt_u32 vcc, 3, v4")
        a("v_mov_b32 v6, 0x40000000")
        a("v_cndmask_b32 v5, v6, v5, vcc")
        a(f"buffer_load_dword v240, v5, s[{sX}:{sX+3}], s51 offen offset:768")
        a("v_mul_u32_u24 v5, 43, v1")
        a("v_lshrrev_b32 v5, 8, v5")
        a("v_mul_u32_u24 v6, 6, v5")
        a("v_sub_u32 v6, v1, v6")
        a("v_lshrrev_b32 v7, 1, v6")
        a("v_mul_u32_u24 v7, 1152, v7")
        a("v_and_b32 v6, 1, v6")
        a("v_lshl_add_u32 v7, v6, 7, v7")
        a("v_mul_u32_u24 v6, 3456, v5")
        a("v_add_u32 v7, v7, v6")
        a("v_cmp_gt_u32 vcc, 7, v5")
        a("v_mov_b32 v6, 0x40000000")
        a("v_cndmask_b32 v7, v6, v7, vcc")
        a(f"s_lshl_b32 s51, s{sRB}, 2")
        a(f"s_add_u32 s51, s51, s{sWV}")
        a("s_mul_i32 s51, s51, 7")
        a("s_add_u32 s51, s51, 128")
        a("s_mul_i32 s51, s51, 3456")
        a(f"s_mul_i32 s52, s{sHG}, 144")
        a("s_add_u32 s51, s51, s52")
        a(f"buffer_load_dword v240, v7, s[{sW}:{sW+3}], s51 offen")
    a.barrier(lds=False)
    stamp(a, 2, PROF)
    for r in reads(0):
        a(r)
    NST = 2 * NCH
    for i in range(NST):
        b = i % 2
        nxt = []
        if i + 1 < NST:
            nxt = reads(i + 1)
        k = 0
        for ct in range(7):
            for rt in range(4):
                srcc = "0" if i == 0 else vr(acc(rt, ct), 4)
                if debug != "nomfma" or i < 1:
                    a(f"v_mfma_f32_16x16x32_bf16 {vr(acc(rt,ct),4)}, {vr(WBUF+b*28+ct*4,4)}, {vr(XBUF+b*16+rt*4,4)}, {srcc}")
                k += 1
                if k == 1 and nxt and (i + 1) % 2 == 0:
                    a.barrier(lds=True)
                    stamp(a, 2 + (i + 1) // 2, PROF)
                if nxt and k >= 2:
                    a(nxt.pop(0))
        for r in nxt:
            a(r)
    stamp(a, 11, PROF)
    for rt in range(4):
        for ct in range(7):
            A0 = acc(rt, ct)
            a(f"v_cvt_pk_bf16_f32 v{A0}, v{A0}, v{A0+1}")
            a(f"v_cvt_pk_bf16_f32 v{A0+1}, v{A0+2}, v{A0+3}")
            a(f"ds_write_b64 v{AT}, {vr(A0,2)} offset:{rt*16*TSTR+ct*32}")
    a.branch("s_branch K1_POST")

    a.label_nodrain("K1_NONCOMPUTE")
    a.vmq = list(pre_vmq)
    a(f"s_cmp_eq_u32 s{sWV}, 7")
    a.branch_nodrain("s_cbranch_scc1 K1_AUX")
    a(f"s_cmp_eq_u32 s{sWV}, 4")
    a.branch_nodrain("s_cbranch_scc0 K1_WLOAD")
    a("v_lshrrev_b32 v3, 3, v1")
    a("v_and_b32 v4, 7, v1")
    a("v_and_b32 v5, 7, v3")
    a("v_xor_b32 v4, v4, v5")
    a("v_lshlrev_b32 v4, 4, v4")
    a("v_mul_u32_u24 v3, 1152, v3")
    a("v_add_u32 v3, v3, v4")
    a(f"s_mul_i32 s51, s{sRB}, {128*1152}")
    def xissue(c):
        st = c % 3
        for i in range(16):
            a(f"s_add_u32 s52, s51, {c*128 + i*9216}")
            a(f"s_mov_b32 m0, {st*STAGE + i*1024}")
            if debug != "noload":
                a(f"buffer_load_dwordx4 v3, s[{sX}:{sX+3}], s52 offen lds")
    xissue(0); xissue(1)
    for c in range(NCH):
        a.waitcnt(vm=16 if c + 1 < NCH else 0)
        stamp(a, 2 + c, PROF)
        a.barrier(lds=False)
        stamp(a, 16 + c, PROF)
        if c + 2 < NCH:
            xissue(c + 2)
    a.branch("s_branch K1_POST")
    a.label_nodrain("K1_WLOAD")
    a.vmq = list(pre_vmq)
    a(f"s_sub_u32 s53, s{sWV}, 5")
    a("s_mul_i32 s54, s53, 960")
    VW = 16
    for t in range(15):
        a(f"v_add_u32 v3, {64*t}, v1")
        a("v_add_u32 v3, s54, v3")
        a("v_mul_u32_u24 v4, 2185, v3")
        a("v_lshrrev_b32 v4, 16, v4")
        a("v_mul_u32_u24 v5, 30, v4")
        a("v_sub_u32 v5, v3, v5")
        a("v_mul_u32_u24 v6, 7282, v5")
        a("v_lshrrev_b32 v6, 16, v6")
        a("v_mul_u32_u24 v7, 9, v6")
        a("v_sub_u32 v7, v5, v7")
        a("v_and_b32 v8, 4, v4")
        a("v_lshlrev_b32 v8, 1, v8")
        a("v_and_b32 v9, 8, v4")
        a("v_lshrrev_b32 v9, 1, v9")
        a("v_and_b32 v10, 0xfffffff3, v4")
        a("v_or3_b32 v10, v10, v8, v9")
        a("v_mul_u32_u24 v10, 3456, v10")
        a("v_mul_u32_u24 v6, 1152, v6")
        a("v_lshl_add_u32 v7, v7, 4, v6")
        a("v_add_u32 v10, v10, v7")
        a("v_cmp_le_u32 vcc, 27, v5")
        a("v_mov_b32 v11, 0x40000000")
        a(f"v_cndmask_b32 v{VW+t}, v10, v11, vcc")
    a(f"s_mul_i32 s51, s{sHG}, 144")
    a("s_mul_i32 s55, s53, 15360")
    def wissue(c):
        st = c % 3
        a(f"s_add_u32 s52, s51, {c*64*3456}")
        for t in range(15):
            a(f"s_add_u32 m0, s55, {st*STAGE + XB + t*1024}")
            if debug != "noload":
                a(f"buffer_load_dwordx4 v{VW+t}, s[{sW}:{sW+3}], s52 offen lds")
    wissue(0); wissue(1)
    for c in range(NCH):
        a.waitcnt(vm=15 if c + 1 < NCH else 0)
        stamp(a, 2 + c, PROF)
        a.barrier(lds=False)
        stamp(a, 16 + c, PROF)
        if c + 2 < NCH:
            wissue(c + 2)
    a.branch("s_branch K1_POST")

    a.label_nodrain("K1_AUX")
    a.vmq = list(pre_vmq)
    a("s_mov_b64 exec, 1")
    a("v_mov_b32 v2, 1")
    a(f"s_lshl_b32 s49, s{sCG}, 2")
    a("v_mov_b32 v3, s49")
    a(f"buffer_atomic_add v2, v3, s[{sDBG}:{sDBG+3}], 0 offen sc0")
    a("s_mov_b64 exec, -1")
    a("v_lshrrev_b32 v4, 3, v1")
    a("v_and_b32 v5, 7, v1")
    a("v_mul_u32_u24 v6, 144, v5")
    a("v_mul_u32_u24 v4, 1152, v4")
    a("v_add_u32 v4, v4, v6")
    a(f"s_lshl_b32 s50, s{sRB}, 7")
    a(f"s_lshl_b32 s51, s{sCG}, 3")
    a("s_add_u32 s50, s50, s51")
    a("s_mul_i32 s51, s50, 1152")
    GX, GWR = 16, 52
    for i in range(9):
        a(f"buffer_load_dwordx4 {vr(GX+4*i,4)}, v4, s[{sX}:{sX+3}], s51 offen offset:{16*i}")
    for i in range(9):
        a(f"buffer_load_dwordx4 {vr(GWR+4*i,4)}, v6, s[{sGW}:{sGW+3}], 0 offen offset:{16*i}")
    a("v_lshrrev_b32 v14, 4, v1")
    a("v_mul_u32_u24 v14, 9216, v14")
    a("v_and_b32 v15, 15, v1")
    a("v_lshl_add_u32 v14, v15, 1, v14")
    a("v_add_u32 v15, 4608, v14")
    WOR = 92
    def wo_scalars(i):
        a(f"s_add_u32 s59, s2, {256*i}")
        a("s_mul_i32 s56, s59, 3641")
        a("s_lshr_b32 s56, s56, 16")
        a("s_mul_i32 s57, s56, 18")
        a("s_sub_u32 s57, s59, s57")
        a("s_mul_i32 s57, s57, 36864")
        a("s_lshl_b32 s56, s56, 5")
        a("s_add_u32 s56, s56, s57")
        a("s_lshl_b32 s57, s59, 10")
        a("s_add_u32 s57, s57, s58")
    def wo_loads(srd_, n):
        for i in range(n):
            if i == 2:
                a("s_cmp_ge_u32 s2, 136")
                a.branch_nodrain(f"s_cbranch_scc1 K1_WOL{srd_}")
            wo_scalars(i)
            for j in range(8):
                a(f"buffer_load_ushort v{WOR+8*i+j}, v{14 if j < 4 else 15}, s[{srd_}:{srd_+3}], s56 offen offset:{(j%4)*1152}")
        a.label_nodrain(f"K1_WOL{srd_}")
    def wo_store(srd_, n):
        a("v_lshlrev_b32 v13, 4, v1")
        for i in range(n):
            if i == 2:
                a("s_cmp_ge_u32 s2, 136")
                a.branch_nodrain(f"s_cbranch_scc1 K1_WOS{srd_}")
            wo_scalars(i)
            for j in range(4):
                a(f"v_lshl_or_b32 v{WOR+8*i+j}, v{WOR+8*i+2*j+1}, 16, v{WOR+8*i+2*j}")
            a(f"buffer_store_dwordx4 {vr(WOR+8*i,4)}, v13, s[{sWS}:{sWS+3}], s57 offen")
        a.label_nodrain(f"K1_WOS{srd_}")
    a(f"s_mov_b32 s58, {WS_WOF}")
    wo_loads(sWOA, 3)
    a.barrier(lds=False)
    a.barrier(lds=False)
    a.waitcnt(vm=0)
    a("v_readfirstlane_b32 s63, v2")
    a("s_cmp_lg_u32 s63, 0")
    a.branch_nodrain("s_cbranch_scc1 K1_AUX_NZ")
    a("v_mov_b32 v8, 0")
    a("v_mov_b32 v9, 0")
    a("v_mov_b32 v10, 0")
    a("v_mov_b32 v11, 0")
    a("v_lshlrev_b32 v7, 4, v1")
    a(f"s_mul_i32 s52, s{sHG}, {4*KVA_HEAD}")
    a(f"s_add_u32 s52, s52, {WS_KVA}")
    a(f"s_mul_i32 s53, s{sHG}, {4*KVB_HEAD}")
    a(f"s_add_u32 s53, s53, {WS_KVB}")
    for i in range(6):
        if i == 4:
            a("s_add_u32 s52, s52, 4096")
        a(f"buffer_store_dwordx4 v[8:11], v7, s[{sWS}:{sWS+3}], s52 offen offset:{(i%4)*1024} sc0 sc1")
    a(f"s_cmp_eq_u32 s{sBR}, 0")
    a.branch_nodrain("s_cbranch_scc1 K1_AUX_NZ")
    for i in range(11):
        if i in (4, 8):
            a("s_add_u32 s53, s53, 4096")
        a(f"buffer_store_dwordx4 v[8:11], v7, s[{sWS}:{sWS+3}], s53 offen offset:{(i%4)*1024} sc0 sc1")
    a.label_nodrain("K1_AUX_NZ")
    wo_store(sWOA, 3)
    a(f"s_mov_b32 s58, {WS_WOF + 648*1024}")
    wo_loads(sWOB, 3)
    a.barrier(lds=False)
    a("v_mov_b32 v12, 0")
    a("v_mov_b32 v13, 0")
    def gate_part(lo, hi):
        for i in range(lo, hi):
            x, w = GX + i, GWR + i
            a(f"v_lshlrev_b32 v88, 16, v{x}")
            a(f"v_and_b32 v89, 0xffff0000, v{x}")
            a(f"v_lshlrev_b32 v90, 16, v{w}")
            a(f"v_and_b32 v91, 0xffff0000, v{w}")
            a("v_pk_mul_f32 v[88:89], v[88:89], v[90:91]")
            a("v_cvt_pk_bf16_f32 v90, v88, v89")
            a("v_lshlrev_b32 v88, 16, v90")
            a("v_and_b32 v89, 0xffff0000, v90")
            a("v_pk_add_f32 v[12:13], v[12:13], v[88:89]")
    gate_part(0, 12)
    a.barrier(lds=False)
    gate_part(12, 24)
    a.barrier(lds=False)
    gate_part(24, 36)
    a("v_add_f32 v12, v12, v13")
    a("v_add_f32_dpp v12, v12, v12 quad_perm:[1,0,3,2] row_mask:0xf bank_mask:0xf")
    a("v_add_f32_dpp v12, v12, v12 quad_perm:[2,3,0,1] row_mask:0xf bank_mask:0xf")
    a("v_add_f32_dpp v12, v12, v12 row_half_mirror row_mask:0xf bank_mask:0xf")
    a("v_cvt_pk_bf16_f32 v12, v12, v12")
    a("v_lshlrev_b32 v12, 16, v12")
    a(f"v_mul_f32 v12, s{sNL}, v12")
    a("v_exp_f32 v12, v12")
    a("v_add_f32 v12, 1.0, v12")
    a("v_rcp_f32 v12, v12")
    a("v_cvt_pk_bf16_f32 v12, v12, v12")
    a("v_lshlrev_b32 v12, 16, v12")
    a("v_lshrrev_b32 v4, 3, v1")
    a("v_lshlrev_b32 v4, 2, v4")
    a("s_lshl_b32 s51, s50, 2")
    a(f"s_add_u32 s51, s51, {WS_G}")
    a("s_mov_b32 s52, 0x01010101")
    a("s_mov_b32 s53, 0x01010101")
    a("s_mov_b64 exec, s[52:53]")
    a(f"buffer_store_dword v12, v4, s[{sWS}:{sWS+3}], s51 offen")
    a("s_mov_b64 exec, -1")
    a.barrier(lds=False)
    a("s_cmp_lg_u32 s63, 0")
    a.branch_nodrain("s_cbranch_scc1 K1_AUX_NF")
    a.waitcnt(vm=0)
    a(f"s_lshl_b32 s49, s{sCG}, 2")
    a("s_add_u32 s49, s49, 64")
    a("s_mov_b64 exec, 1")
    a("v_mov_b32 v2, 1")
    a(f"buffer_store_dword v2, off, s[{sDBG}:{sDBG+3}], s49 sc0 sc1")
    a("s_mov_b64 exec, -1")
    a.label_nodrain("K1_AUX_NF")
    a.waitcnt(vm=0)
    wo_store(sWOB, 3)
    for c in range(6, NCH):
        a.barrier(lds=False)
    a.branch("s_branch K1_POST")

    a.label("K1_POST")
    a.barrier(lds=True)
    stamp(a, 12, PROF)
    if debug == "dumpT":
        a(f"s_mul_i32 s51, s2, 65536")
        a(f"s_add_u32 s51, s51, {WS_DBG}")
        a("v_lshlrev_b32 v3, 4, v0")
        for it in range((P_OFF + 8191) // 8192):
            a(f"ds_read_b128 v[4:7], v3 offset:{it*8192}")
            a(f"s_add_u32 s52, s51, {it*8192}")
            a(f"buffer_store_dwordx4 v[4:7], v3, s[{sWS}:{sWS+3}], s52 offen")
        a.drain()
        a.branch("s_branch K1_END")
    a(f"s_lshl_b32 s61, s{sCG}, 2")
    a("s_add_u32 s61, s61, 64")
    a(f"buffer_load_dword v62, off, s[{sDBG}:{sDBG+3}], s61 sc0 sc1")
    a("v_mov_b32 v63, 0x3f803f80")
    a("v_and_b32 v8, 31, v1")
    a("v_lshrrev_b32 v9, 5, v1")
    a("v_and_b32 v10, 15, v1")
    a("v_lshrrev_b32 v11, 4, v1")
    a("v_lshrrev_b32 v12, 1, v11")
    a("v_lshlrev_b32 v12, 3, v12")
    a("v_lshrrev_b32 v13, 2, v10")
    a("v_add_u32 v12, v12, v13")
    a("v_and_b32 v13, 1, v11")
    a("v_lshlrev_b32 v13, 5, v13")
    a("v_and_b32 v14, 3, v10")
    a("v_lshl_add_u32 v13, v14, 3, v13")
    a(f"s_and_b32 s49, s{sWV}, 3")
    a("s_and_b32 s60, s49, 1")
    a("s_lshl_b32 s60, s60, 1")
    a(f"s_lshl_b32 s50, s{sHG}, 2")
    a("s_add_u32 s50, s50, s49")
    a(f"s_cmp_eq_u32 s{sBR}, 1")
    a.branch_nodrain("s_cbranch_scc1 K1_POST_B")
    post_vmq = list(a.vmq)

    a(f"s_cmp_ge_u32 s{sWV}, 4")
    a.branch_nodrain("s_cbranch_scc1 K1_PA_Q")
    a(f"v_mul_u32_u24 v2, {TSTR}, v1")
    a("s_mul_i32 s51, s49, 36")
    a("s_add_u32 s51, s51, 144")
    a("v_add_u32 v2, s51, v2")
    KR = [16, 20, 24, 28, 32, 36]
    for t in range(2):
        a(f"ds_read_b128 {vr(16+12*t,4)}, v2 offset:{t*64*TSTR}")
        a(f"ds_read_b128 {vr(20+12*t,4)}, v2 offset:{t*64*TSTR+16}")
        a(f"ds_read_b32 v{24+12*t}, v2 offset:{t*64*TSTR+32}")
    phi_multi(a, list(range(16, 25)) + list(range(28, 37)), 40)
    for t in range(2):
        a(f"ds_write_b128 v2, {vr(16+12*t,4)} offset:{t*64*TSTR}")
        a(f"ds_write_b128 v2, {vr(20+12*t,4)} offset:{t*64*TSTR+16}")
        a(f"ds_write_b32 v2, v{24+12*t} offset:{t*64*TSTR+32}")
    a(f"v_mul_u32_u24 v3, {TSTR}, v12")
    a("v_add_u32 v3, v3, v13")
    a("s_sub_u32 s51, s51, s60")
    a("s_sub_u32 s51, s51, s60")
    a("v_add_u32 v3, s51, v3")
    kv_stream(a, 3, 144, 16 * TSTR, 3, 0, 16 * TSTR, 96)
    a("v_mul_u32_u24 v4, 320, v9")
    a("v_lshl_add_u32 v4, v8, 2, v4")
    a("s_lshl_b32 s51, 0x3ffff, s60")
    a(f"s_mov_b32 s{sMB}, s51")
    a(f"s_mov_b32 s{sMB+1}, s51")
    a(f"s_mov_b32 s{sML}, s51")
    a(f"s_mov_b32 s{sML+1}, 0")
    a(f"s_mov_b32 s{sMH}, 0")
    a(f"s_mov_b32 s{sMH+1}, s51")
    a("s_cmp_eq_u32 s60, 0")
    a(f"s_cselect_b32 s{sM01}, s51, 0")
    a(f"s_mov_b32 s{sM01+1}, s51")
    a(f"s_mul_i32 s52, s50, {KVA_HEAD}")
    a(f"s_add_u32 s52, s52, {WS_KVA}")
    a("s_lshl_b32 s53, s60, 2")
    a("s_sub_u32 s53, s52, s53")
    a("s_mul_i32 s54, s60, 84")
    a("s_sub_u32 s52, s52, s54")
    poll_flag(a, 62, "K1_PA_POLL")
    kv_atomics(a, 96, 4, 52, 53, 80, "K1_PA_AT")
    a.branch("s_branch K1_END")

    a.label_nodrain("K1_PA_Q")
    a.vmq = list(post_vmq)
    a(f"s_sub_u32 s51, s{sWV}, 4")
    a("s_lshl_b32 s52, s51, 5")
    a("v_add_u32 v2, s52, v8")
    a(f"v_mul_u32_u24 v2, {TSTR}, v2")
    a("v_lshl_add_u32 v3, v9, 4, v2")
    a("v_mul_u32_u24 v4, 72, v9")
    a("v_add_u32 v4, v4, v2")
    for hl in range(4):
        a(f"ds_read_b128 {vr(16+4*hl,4)}, v3 offset:{36*hl}")
    a("ds_read_b32 v32, v4 offset:32")
    a("ds_read_b32 v33, v4 offset:68")
    phi_multi(a, list(range(16, 34)), 40)
    a(f"s_lshl_b32 s52, s{sRB}, 2")
    a("s_add_u32 s52, s52, s51")
    a("s_lshl_b32 s53, s52, 5")
    a(f"s_lshl_b32 s54, s{sHG}, 2")
    a("s_add_u32 s53, s53, s54")
    a("s_lshl_b32 s53, s53, 10")
    a(f"s_add_u32 s53, s53, {WS_PHIQA}")
    a("v_lshlrev_b32 v5, 4, v1")
    for hl in range(4):
        a(f"buffer_store_dwordx4 {vr(16+4*hl,4)}, v5, s[{sWS}:{sWS+3}], s53 offen offset:{hl*1024}")
    a("s_lshl_b32 s52, s52, 2")
    a(f"s_lshr_b32 s54, s{sHG}, 1")
    a("s_add_u32 s52, s52, s54")
    a("s_lshl_b32 s52, s52, 10")
    a(f"s_and_b32 s54, s{sHG}, 1")
    a("s_lshl_b32 s54, s54, 9")
    a("s_add_u32 s52, s52, s54")
    a(f"s_add_u32 s52, s52, {WS_PHIQA_LEFT}")
    a("v_lshlrev_b32 v6, 4, v8")
    a("v_lshl_add_u32 v6, v9, 3, v6")
    a(f"buffer_store_dwordx2 v[32:33], v6, s[{sWS}:{sWS+3}], s52 offen")
    a.branch("s_branch K1_END")

    a.label_nodrain("K1_POST_B")
    a.vmq = list(post_vmq)
    for j in range(5):
        a(f"v_lshl_or_b32 v{WPHI+j}, v{WPHI_HI+j}, 16, v{WPHI+j}")
    a(f"s_lshr_b32 s51, s{sWV}, 2")
    a("s_lshl_b32 s52, s51, 6")
    a("v_add_u32 v2, s52, v8")
    a(f"v_mul_u32_u24 v5, {PSTR}, v2")
    a(f"v_mul_u32_u24 v2, {TSTR}, v2")
    a("s_mul_i32 s52, s49, 36")
    a("v_lshl_add_u32 v2, v9, 4, v2")
    a("v_add_u32 v2, s52, v2")
    a("s_mul_i32 s52, s49, 80")
    a(f"s_add_u32 s52, s52, {P_OFF}")
    a("v_lshl_add_u32 v5, v9, 4, v5")
    a("v_add_u32 v5, s52, v5")
    D = 96
    E, N = 16, 28
    OP, ON = 40, 46
    def tile(part, g):
        base = g * 32 * TSTR + part * 144
        a(f"ds_read_b128 v[64:67], v2 offset:{base}")
        a(f"ds_read_b128 v[68:71], v2 offset:{base+32}")
        a(f"v_mfma_f32_32x32x16_bf16 {vr(D,16)}, {vr(WPHI,4)}, v[64:67], 0")
        a(f"v_mfma_f32_32x32x16_bf16 {vr(D,16)}, {vr(WPHI+4,4)}, v[68:71], {vr(D,16)}")
        for i in range(5):
            a(f"v_cvt_pk_bf16_f32 v{50+i}, v{D+2*i}, v{D+2*i+1}")
        for i in range(5):
            a(f"v_lshlrev_b32 v{D+2*i}, 16, v{50+i}")
            a(f"v_and_b32 v{D+2*i+1}, 0xffff0000, v{50+i}")
        a(f"v_max3_f32 v56, v{D}, v{D+1}, v{D+2}")
        a(f"v_min3_f32 v57, v{D}, v{D+1}, v{D+2}")
        a(f"v_max3_f32 v56, v56, v{D+3}, v{D+4}")
        a(f"v_min3_f32 v57, v57, v{D+3}, v{D+4}")
        a(f"v_max3_f32 v56, v56, v{D+5}, v{D+6}")
        a(f"v_min3_f32 v57, v57, v{D+5}, v{D+6}")
        a(f"v_max_f32 v56, v56, v{D+7}")
        a(f"v_min_f32 v57, v57, v{D+7}")
        a(f"s_mov_b64 exec, s[{sLO}:{sLO+1}]")
        a(f"v_max3_f32 v56, v56, v{D+8}, v{D+9}")
        a(f"v_min3_f32 v57, v57, v{D+8}, v{D+9}")
        a("s_mov_b64 exec, -1")
        a("v_mov_b32 v58, v56")
        a("v_mov_b32 v59, v57")
        a("v_permlane32_swap_b32 v56, v58")
        a("v_permlane32_swap_b32 v57, v59")
        a("v_max_f32 v56, v56, v58")
        a("v_min_f32 v57, v57, v59")
        a(f"v_mul_f32 v88, s{sNL}, v56")
        a(f"v_mul_f32 v90, s{sL}, v57")
        a("v_mov_b32 v89, v88")
        a("v_mov_b32 v91, v90")
        for i in range(5):
            a(f"v_pk_fma_f32 {vr(E+2*i,2)}, {vr(D+2*i,2)}, s[{sL}:{sL+1}], v[88:89]")
            a(f"v_pk_fma_f32 {vr(N+2*i,2)}, {vr(D+2*i,2)}, s[{sNL}:{sNL+1}], v[90:91]")
        for i in range(10):
            a(f"v_exp_f32 v{E+i}, v{E+i}")
            a(f"v_exp_f32 v{N+i}, v{N+i}")
        a(f"v_pk_add_f32 v[52:53], {vr(E,2)}, {vr(E+2,2)}")
        a(f"v_pk_add_f32 v[56:57], {vr(N,2)}, {vr(N+2,2)}")
        a(f"v_pk_add_f32 v[54:55], {vr(E+4,2)}, {vr(E+6,2)}")
        a(f"v_pk_add_f32 v[58:59], {vr(N+4,2)}, {vr(N+6,2)}")
        a("v_pk_add_f32 v[52:53], v[52:53], v[54:55]")
        a("v_pk_add_f32 v[56:57], v[56:57], v[58:59]")
        a("v_add_f32 v52, v52, v53")
        a("v_add_f32 v56, v56, v57")
        a(f"s_mov_b64 exec, s[{sLO}:{sLO+1}]")
        a(f"v_add_f32 v52, v52, v{E+8}")
        a(f"v_add_f32 v56, v56, v{N+8}")
        a(f"v_add_f32 v52, v52, v{E+9}")
        a(f"v_add_f32 v56, v56, v{N+9}")
        a("s_mov_b64 exec, -1")
        a("v_mov_b32 v53, v52")
        a("v_mov_b32 v57, v56")
        a("v_permlane32_swap_b32 v52, v53")
        a("v_permlane32_swap_b32 v56, v57")
        a("v_add_f32 v52, v52, v53")
        a("v_add_f32 v56, v56, v57")
        a("v_rcp_f32 v52, v52")
        a("v_rcp_f32 v56, v56")
        a("v_mov_b32 v53, v52")
        a("v_mov_b32 v57, v56")
        for i in range(5):
            a(f"v_pk_mul_f32 {vr(E+2*i,2)}, {vr(E+2*i,2)}, v[52:53]")
            a(f"v_pk_mul_f32 {vr(N+2*i,2)}, {vr(N+2*i,2)}, v[56:57]")
        for i in range(4):
            a(f"v_cvt_pk_bf16_f32 v{OP+i}, v{E+2*i}, v{E+2*i+1}")
            a(f"v_cvt_pk_bf16_f32 v{ON+i}, v{N+2*i}, v{N+2*i+1}")
        a(f"v_cvt_pk_bf16_f32 v44, v{E+8}, v{E+9}")
        a(f"v_cvt_pk_bf16_f32 v45, v{N+8}, v{N+9}")
    for g in range(2):
        tile(1, g)
        a(f"ds_write_b128 v5, {vr(OP,4)} offset:{g*32*PSTR}")
        a(f"ds_write_b128 v5, {vr(ON,4)} offset:{g*32*PSTR+32}")
        a(f"s_mov_b64 exec, s[{sLO}:{sLO+1}]")
        a(f"ds_write_b64 v5, v[44:45] offset:{g*32*PSTR+64}")
        a("s_mov_b64 exec, -1")
    stamp(a, 13, PROF)
    a.barrier(lds=True)
    stamp(a, 14, PROF)
    a(f"v_mul_u32_u24 v3, {TSTR}, v12")
    a("v_add_u32 v3, v3, v13")
    a("s_mul_i32 s52, s49, 36")
    a("s_sub_u32 s52, s52, s60")
    a("s_sub_u32 s52, s52, s60")
    a("v_add_u32 v3, s52, v3")
    a(f"v_mul_u32_u24 v4, {PSTR}, v12")
    a("v_add_u32 v4, v4, v13")
    a("s_mul_i32 s52, s49, 80")
    a("s_lshl_b32 s53, s51, 6")
    a("s_add_u32 s52, s52, s53")
    a(f"s_add_u32 s52, s52, {P_OFF}")
    a("v_add_u32 v4, s52, v4")
    kv_stream(a, 3, 288, 16 * TSTR, 4, 0, 16 * PSTR, D)
    a("v_mul_u32_u24 v4, 576, v9")
    a("v_lshl_add_u32 v4, v8, 2, v4")
    a("s_cmp_eq_u32 s51, 0")
    a("s_cselect_b32 s52, -1, 0xf")
    a(f"s_mov_b32 s{sMB}, s52")
    a(f"s_mov_b32 s{sMB+1}, s52")
    a(f"s_mov_b32 s{sML}, s52")
    a(f"s_mov_b32 s{sML+1}, 0")
    a(f"s_mov_b32 s{sMH}, 0")
    a(f"s_mov_b32 s{sMH+1}, s52")
    a("s_cmp_eq_u32 s60, 0")
    a(f"s_cselect_b32 s{sM01}, s52, 0")
    a(f"s_mov_b32 s{sM01+1}, s52")
    a(f"s_mul_i32 s52, s50, {KVB_HEAD}")
    a(f"s_add_u32 s52, s52, {WS_KVB}")
    a("s_lshl_b32 s53, s51, 7")
    a("s_add_u32 s53, s52, s53")
    a("s_mul_i32 s54, s60, 144")
    a("s_sub_u32 s52, s53, s54")
    poll_flag(a, 62, "K1_PB_POLL")
    kv_atomics(a, D, 4, 52, 53, 144, "K1_PB_AT")
    stamp(a, 15, PROF)
    a("v_lshlrev_b32 v6, 4, v1")
    a("s_lshr_b32 s52, s49, 1")
    a("s_lshl_b32 s52, s52, 9")
    a("s_and_b32 s53, s49, 1")
    a("s_lshl_b32 s53, s53, 3")
    a("s_add_u32 s52, s52, s53")
    a("v_lshl_add_u32 v7, v8, 4, s52")
    for g in range(2):
        tile(0, g)
        a(f"s_lshl_b32 s52, s{sRB}, 2")
        a("s_lshl_b32 s53, s51, 1")
        a("s_add_u32 s52, s52, s53")
        a(f"s_add_u32 s52, s52, {g}")
        a("s_lshl_b32 s53, s52, 5")
        a("s_add_u32 s53, s53, s50")
        a("s_lshl_b32 s53, s53, 11")
        a(f"s_add_u32 s53, s53, {WS_PHIQB}")
        a(f"buffer_store_dwordx4 {vr(OP,4)}, v6, s[{sWS}:{sWS+3}], s53 offen")
        a(f"buffer_store_dwordx4 {vr(ON,4)}, v6, s[{sWS}:{sWS+3}], s53 offen offset:1024")
        a("s_lshl_b32 s52, s52, 3")
        a(f"s_add_u32 s52, s52, s{sHG}")
        a("s_lshl_b32 s52, s52, 10")
        a(f"s_add_u32 s52, s52, {WS_PHIQB_LEFT}")
        a(f"s_mov_b64 exec, s[{sLO}:{sLO+1}]")
        a(f"buffer_store_dwordx2 v[44:45], v7, s[{sWS}:{sWS+3}], s52 offen")
        a("s_mov_b64 exec, -1")
    a.label_nodrain("K1_END")
    if PROF:
        a.label("K1_ENDP")
        stamp(a, 30, PROF)
        a(f"s_lshl_b32 s98, s2, 3")
        a(f"s_add_u32 s98, s98, s{sWV}")
        a("s_lshl_b32 s98, s98, 8")
        a(f"s_add_u32 s98, s98, {WS_DBG}")
        a("v_lshlrev_b32 v2, 2, v1")
        a(f"buffer_store_dword v{PROF_V}, v2, s[{sWS}:{sWS+3}], s98 offen")
    a.label_nodrain("K1_EXIT")
    a("s_endpgm")
    return a
```

```python
from gen_common import *

OSTR = 1168
O_BYTES = 64 * OSTR
XCH = O_BYTES
LDS_K2 = O_BYTES + 4 * 6144

sOUT, sWS = 8, 16
sRG, sNS, sWV, sR0 = 44, 45, 46, 47
sLO, sHM, sUP = 76, 78, 80
sEPS = 72

def vr(b, n=1):
    return f"v{b}" if n == 1 else f"v[{b}:{b+n-1}]"

KVA0 = lambda hl: 16 + 10 * hl
KVBR = lambda hl: 96 + 20 * hl
KVB0 = lambda hl: 96 + 12 * hl
PQA = lambda rgi, hl: 56 + (rgi * 5 + hl) * 4
PQB = lambda rgi, i: 176 + (rgi * 9 + i) * 4
DBS = [[176, 192], [16, 32]]
TMPS = [208, 48]
ACC = 16; BB = 64; AB = 176; APK = 144; ETMP = 224

def gen_k2(debug=None):
    a = Asm()
    a.raw(".globl k2_kernel\n.p2align 8\n.type k2_kernel,@function\nk2_kernel:")
    PROF = (debug == "prof")
    a("s_cmp_ge_u32 s2, 192")
    a("s_cbranch_scc1 K2_EXIT")
    stamp(a, 0, PROF)
    a("s_load_dwordx2 s[4:5], s[0:1], 64")
    a("s_load_dwordx2 s[6:7], s[0:1], 80")
    a("v_lshrrev_b32 v2, 6, v0")
    a(f"v_readfirstlane_b32 s{sWV}, v2")
    a("v_and_b32 v1, 63, v0")
    a("s_and_b32 s48, s2, 7")
    a("s_lshr_b32 s49, s2, 3")
    a("s_mul_i32 s50, s49, 43")
    a("s_lshr_b32 s50, s50, 8")
    a("s_mul_i32 s51, s50, 6")
    a(f"s_sub_u32 s{sNS}, s49, s51")
    a("s_lshl_b32 s50, s50, 3")
    a("s_add_u32 s50, s50, s48")
    a(f"s_lshl_b32 s{sRG}, s50, 1")
    a(f"s_lshl_b32 s{sR0}, s50, 6")
    a(f"s_mov_b32 s{sLO}, -1")
    a(f"s_mov_b32 s{sLO+1}, 0")
    a(f"s_mov_b32 s{sUP}, 0")
    a(f"s_mov_b32 s{sUP+1}, -1")
    a(f"s_and_b32 s51, s{sWV}, 1")
    a("s_cmp_eq_u32 s51, 0")
    a(f"s_cselect_b32 s{sHM}, -1, 0")
    a(f"s_cselect_b32 s{sHM+1}, 0, -1")
    a(f"s_mov_b32 s{sEPS}, 0x358637bd")
    a.waitcnt(lgkm=0)
    srd(a, sOUT, 4, 5, 2359296)
    srd(a, sWS, 6, 7, 268435456)
    a("v_and_b32 v9, 31, v1")
    a("v_lshrrev_b32 v10, 5, v1")
    a("v_mov_b32 v11, 0x40000000")
    a("v_cmp_gt_u32 vcc, 19, v9")
    a("v_mul_u32_u24 v2, 80, v9")
    a("v_add_u32 v3, 64, v2")
    a("v_lshl_add_u32 v2, v10, 5, v2")
    a("v_cndmask_b32 v2, v11, v2, vcc")
    a("v_cndmask_b32 v3, v11, v3, vcc")
    a("v_mul_u32_u24 v4, 144, v9")
    a("v_add_u32 v5, 128, v4")
    a("v_lshl_add_u32 v4, v10, 5, v4")
    a("v_cndmask_b32 v4, v11, v4, vcc")
    a("v_cndmask_b32 v5, v11, v5, vcc")
    a("v_lshlrev_b32 v6, 4, v1")
    a(f"v_mul_u32_u24 v7, {OSTR}, v9")
    a("v_lshl_add_u32 v7, v10, 3, v7")
    a(f"s_mul_i32 s51, s{sWV}, 144")
    a("v_add_u32 v7, s51, v7")
    a("v_and_b32 v12, 15, v1")
    a("v_lshrrev_b32 v13, 4, v1")
    a(f"v_mul_u32_u24 v8, {OSTR}, v12")
    a("v_lshl_add_u32 v8, v13, 4, v8")
    a(f"s_and_b32 s51, s{sWV}, 1")
    a(f"s_mul_i32 s52, s51, {32*OSTR}")
    a("v_add_u32 v14, s52, v8")
    a(f"s_sub_u32 s52, {32*OSTR}, s52")
    a("v_add_u32 v15, s52, v8")

    def kv_loads_A():
        for hl in range(4):
            R = KVA0(hl)
            a(f"s_lshl_b32 s52, s{sWV}, 2")
            a(f"s_add_u32 s52, s52, {hl}")
            a(f"s_mul_i32 s52, s52, {KVA_HEAD}")
            a(f"s_add_u32 s52, s52, {WS_KVA}")
            a(f"buffer_load_dwordx4 {vr(R,4)}, v2, s[{sWS}:{sWS+3}], s52 offen")
            a(f"buffer_load_dwordx4 {vr(R+4,4)}, v2, s[{sWS}:{sWS+3}], s52 offen offset:16")
            a(f"buffer_load_dwordx2 {vr(R+8,2)}, v3, s[{sWS}:{sWS+3}], s52 offen")
    def kv_loads_B():
        for hl in range(4):
            R = KVBR(hl)
            a(f"s_lshl_b32 s52, s{sWV}, 2")
            a(f"s_add_u32 s52, s52, {hl}")
            a(f"s_mul_i32 s52, s52, {KVB_HEAD}")
            a(f"s_add_u32 s52, s52, {WS_KVB}")
            a(f"buffer_load_dwordx4 {vr(R,4)}, v4, s[{sWS}:{sWS+3}], s52 offen")
            a(f"buffer_load_dwordx4 {vr(R+4,4)}, v4, s[{sWS}:{sWS+3}], s52 offen offset:16")
            a(f"buffer_load_dwordx4 {vr(R+8,4)}, v4, s[{sWS}:{sWS+3}], s52 offen offset:64")
            a(f"buffer_load_dwordx4 {vr(R+12,4)}, v4, s[{sWS}:{sWS+3}], s52 offen offset:80")
            a(f"buffer_load_dwordx4 {vr(R+16,4)}, v5, s[{sWS}:{sWS+3}], s52 offen")
    def pq_loads_A():
        for rgi in range(2):
            a(f"s_add_u32 s52, s{sRG}, {rgi}")
            a("s_lshl_b32 s53, s52, 5")
            a(f"s_lshl_b32 s54, s{sWV}, 2")
            a("s_add_u32 s53, s53, s54")
            a("s_lshl_b32 s53, s53, 10")
            a(f"s_add_u32 s53, s53, {WS_PHIQA}")
            for hl in range(4):
                a(f"buffer_load_dwordx4 {vr(PQA(rgi,hl),4)}, v6, s[{sWS}:{sWS+3}], s53 offen offset:{hl*1024}")
            a("s_lshl_b32 s53, s52, 2")
            a(f"s_lshr_b32 s54, s{sWV}, 1")
            a("s_add_u32 s53, s53, s54")
            a("s_lshl_b32 s53, s53, 10")
            a(f"s_add_u32 s53, s53, {WS_PHIQA_LEFT}")
            a(f"buffer_load_dwordx4 {vr(PQA(rgi,4),4)}, v6, s[{sWS}:{sWS+3}], s53 offen")
    def pq_loads_B():
        for rgi in range(2):
            a(f"s_add_u32 s52, s{sRG}, {rgi}")
            a("s_lshl_b32 s53, s52, 5")
            a(f"s_lshl_b32 s54, s{sWV}, 2")
            a("s_add_u32 s53, s53, s54")
            a("s_lshl_b32 s53, s53, 11")
            a(f"s_add_u32 s53, s53, {WS_PHIQB}")
            for i in range(8):
                if i == 4:
                    a("s_add_u32 s53, s53, 4096")
                a(f"buffer_load_dwordx4 {vr(PQB(rgi,i),4)}, v6, s[{sWS}:{sWS+3}], s53 offen offset:{(i%4)*1024}")
            a("s_lshl_b32 s53, s52, 3")
            a(f"s_add_u32 s53, s53, s{sWV}")
            a("s_lshl_b32 s53, s53, 10")
            a(f"s_add_u32 s53, s53, {WS_PHIQB_LEFT}")
            a(f"buffer_load_dwordx4 {vr(PQB(rgi,8),4)}, v6, s[{sWS}:{sWS+3}], s53 offen")
    kv_loads_A()
    pq_loads_A()
    stamp(a, 1, PROF)

    def norm(D, rgi, hl, T):
        a(f"v_cvt_pk_bf16_f32 v{T}, v{D+10}, v{D+10}")
        a(f"v_lshlrev_b32 v{T}, 16, v{T}")
        a(f"v_add_f32 v{T}, s{sEPS}, v{T}")
        a(f"v_cvt_pk_bf16_f32 v{T}, v{T}, v{T}")
        a(f"v_lshlrev_b32 v{T}, 16, v{T}")
        a(f"v_mov_b32 v{T+1}, v{T}")
        a(f"v_permlane32_swap_b32 v{T}, v{T+1}")
        a(f"v_rcp_f32 v{T}, v{T}")
        for i in range(5):
            a(f"v_cvt_pk_bf16_f32 v{T+2+i}, v{D+2*i}, v{D+2*i+1}")
        a(f"v_mov_b32 v{T+1}, v{T}")
        for i in range(5):
            a(f"v_lshlrev_b32 v{D+2*i}, 16, v{T+2+i}")
            a(f"v_and_b32 v{D+2*i+1}, 0xffff0000, v{T+2+i}")
        for i in range(5):
            a(f"v_pk_mul_f32 {vr(D+2*i,2)}, {vr(D+2*i,2)}, {vr(T,2)}")
        for i in range(5):
            a(f"v_cvt_pk_bf16_f32 v{T+2+i}, v{D+2*i}, v{D+2*i+1}")
        off = rgi * 32 * OSTR + hl * 36
        a(f"ds_write_b64 v7, {vr(T+2,2)} offset:{off}")
        a(f"ds_write_b64 v7, {vr(T+4,2)} offset:{off+16}")
        a(f"s_mov_b64 exec, s[{sLO}:{sLO+1}]")
        a(f"ds_write_b32 v7, v{T+6} offset:{off+32}")
        a("s_mov_b64 exec, -1")
    def convert_kvb():
        for hl in range(4):
            R = KVBR(hl); Dd = KVB0(hl)
            for i in range(4):
                a(f"v_cvt_pk_bf16_f32 v{Dd+i}, v{R+2*i}, v{R+2*i+1}")
            for i in range(4):
                a(f"v_cvt_pk_bf16_f32 v{Dd+4+i}, v{R+8+2*i}, v{R+9+2*i}")
            a(f"v_cvt_pk_bf16_f32 v{R+16}, v{R+16}, v{R+17}")
            a(f"v_cvt_pk_bf16_f32 v{R+17}, v{R+18}, v{R+19}")
            msk = sLO if hl < 2 else sUP
            for i in range(4):
                if i // 2 == (hl & 1):
                    a(f"v_cndmask_b32 v{Dd+8+i}, 0, v{R+16+(i&1)}, s[{msk}:{msk+1}]")
                else:
                    a(f"v_mov_b32 v{Dd+8+i}, 0")
    def phase1(br):
        DB = DBS[br]; TMP = TMPS[br]
        if br == 0:
            for hl in range(4):
                R = KVA0(hl)
                for i in range(4):
                    a(f"v_cvt_pk_bf16_f32 v{R+i}, v{R+2*i}, v{R+2*i+1}")
                a(f"v_cvt_pk_bf16_f32 v{R+8}, v{R+8}, v{R+9}")
                for i in range(4):
                    if i == hl:
                        a(f"v_cndmask_b32 v{R+4+i}, 0, v{R+8}, s[{sHM}:{sHM+1}]")
                    else:
                        a(f"v_mov_b32 v{R+4+i}, 0")
        tiles = [(rgi, hl) for rgi in range(2) for hl in range(4)]
        def mf(t):
            rgi, hl = tiles[t]
            D = DB[t % 2]
            if br == 0:
                R = KVA0(hl)
                a(f"v_mfma_f32_32x32x16_bf16 {vr(D,16)}, {vr(R,4)}, {vr(PQA(rgi,hl),4)}, 0")
                a(f"v_mfma_f32_32x32x16_bf16 {vr(D,16)}, {vr(R+4,4)}, {vr(PQA(rgi,4),4)}, {vr(D,16)}")
            else:
                R = KVB0(hl)
                a(f"v_mfma_f32_32x32x16_bf16 {vr(D,16)}, {vr(R,4)}, {vr(PQB(rgi,2*hl),4)}, 0")
                a(f"v_mfma_f32_32x32x16_bf16 {vr(D,16)}, {vr(R+4,4)}, {vr(PQB(rgi,2*hl+1),4)}, {vr(D,16)}")
                a(f"v_mfma_f32_32x32x16_bf16 {vr(D,16)}, {vr(R+8,4)}, {vr(PQB(rgi,8),4)}, {vr(D,16)}")
        mf(0)
        for t in range(8):
            if t + 1 < 8:
                mf(t + 1)
            if br == 0 and t == 1:
                kv_loads_B()
            norm(DB[t % 2], *tiles[t], TMP)

    def a_loads(br, k):
        for ct in range(3):
            a(f"s_add_u32 s56, s55, {ct*18432 + k*1024}")
            a(f"buffer_load_dwordx4 {vr(AB+(k%4)*12+ct*4,4)}, v6, s[{sWS}:{sWS+3}], s56 offen")
    def gemm_pre(br):
        a(f"s_lshr_b32 s52, s{sWV}, 1")
        a("s_mul_i32 s52, s52, 3")
        a(f"s_mul_i32 s53, s{sNS}, 6")
        a("s_add_u32 s52, s52, s53")
        a(f"s_add_u32 s52, s52, {br*36}")
        a("s_mul_i32 s55, s52, 18432")
        a(f"s_and_b32 s53, s{sWV}, 1")
        a("s_mul_i32 s54, s53, 9216")
        a("s_add_u32 s55, s55, s54")
        a(f"s_add_u32 s55, s55, {WS_WOF}")
        a("s_mul_i32 s57, s53, 576")
        for k in range(3):
            a_loads(br, k)
    def b_reads(k):
        for j in range(4):
            a(f"ds_read_b128 {vr(BB+(k%2)*16+j*4,4)}, v{14 if j < 2 else 15} offset:{(j&1)*16*OSTR + k*64}")
    def gemm(br):
        b_reads(0)
        for k in range(9):
            if k + 3 < 9:
                a_loads(br, k + 3)
            if k + 1 < 9:
                b_reads(k + 1)
            for j in range(4):
                for ct in range(3):
                    A0 = ACC + (j * 3 + ct) * 4
                    a(f"v_mfma_f32_16x16x32_bf16 {vr(A0,4)}, {vr(AB+(k%4)*12+ct*4,4)}, {vr(BB+(k%2)*16+j*4,4)}, {'0' if k == 0 else vr(A0,4)}")
    def exchange():
        a(f"s_mul_i32 s52, s{sWV}, 6144")
        a(f"s_add_u32 s52, s52, {XCH}")
        a("v_add_u32 v9, s52, v6")
        for i in range(6):
            a(f"ds_write_b128 v9, {vr(ACC+24+4*i,4)} offset:{i*1024}")
        a.barrier(lds=True)
        a(f"s_xor_b32 s52, s{sWV}, 1")
        a("s_mul_i32 s52, s52, 6144")
        a(f"s_add_u32 s52, s52, {XCH}")
        a("v_add_u32 v9, s52, v6")
        for i in range(6):
            a(f"ds_read_b128 {vr(BB+4*i,4)}, v9 offset:{i*1024}")
        for i in range(24):
            a(f"v_add_f32 v{ACC+i}, v{ACC+i}, v{BB+i}")

    phase1(0)
    convert_kvb()
    stamp(a, 2, PROF)
    a(f"s_cmp_ge_u32 s{sWV}, 4")
    a.branch_nodrain("s_cbranch_scc1 K2_IDLE_A")
    q0 = list(a.vmq)
    a(f"s_and_b32 s53, s{sWV}, 1")
    a("s_mul_i32 s53, s53, 576")
    a("v_add_u32 v14, s53, v14")
    a("v_add_u32 v15, s53, v15")
    gemm_pre(0)
    a.barrier(lds=True)
    stamp(a, 3, PROF)
    gemm(0)
    stamp(a, 4, PROF)
    pq_loads_B()
    exchange()
    for i in range(12):
        a(f"v_cvt_pk_bf16_f32 v{APK+i}, v{ACC+2*i}, v{ACC+2*i+1}")
    stamp(a, 5, PROF)
    a.branch_nodrain("s_branch K2_JOIN_B")
    q1 = list(a.vmq)
    a.label_nodrain("K2_IDLE_A")
    a.vmq = list(q0)
    pq_loads_B()
    a.barrier(lds=True)
    a.barrier(lds=True)
    a.label_nodrain("K2_JOIN_B")
    assert len(a.vmq) == len(q1) == 18, (len(a.vmq), len(q1))
    phase1(1)
    stamp(a, 6, PROF)
    a(f"s_cmp_ge_u32 s{sWV}, 4")
    a.branch_nodrain("s_cbranch_scc1 K2_IDLE_B")
    q0 = list(a.vmq)
    gemm_pre(1)
    a.barrier(lds=True)
    stamp(a, 7, PROF)
    gemm(1)
    stamp(a, 8, PROF)
    a(f"s_and_b32 s53, s{sWV}, 1")
    a("s_lshl_b32 s53, s53, 5")
    a(f"s_add_u32 s53, s53, s{sR0}")
    a("s_lshl_b32 s54, s53, 2")
    a(f"s_add_u32 s54, s54, {WS_G}")
    a("v_lshlrev_b32 v10, 2, v12")
    a(f"buffer_load_dword v{ETMP}, v10, s[{sWS}:{sWS+3}], s54 offen")
    a(f"buffer_load_dword v{ETMP+2}, v10, s[{sWS}:{sWS+3}], s54 offen offset:64")
    exchange()
    stamp(a, 9, PROF)
    G = ETMP
    for sl in range(2):
        g = G + 2 * sl
        og = G + 4 + 2 * sl
        a(f"v_mov_b32 v{g+1}, v{g}")
        a(f"v_sub_f32 v{og}, 1.0, v{g}")
        a(f"v_cvt_pk_bf16_f32 v{og}, v{og}, v{og}")
        a(f"v_lshlrev_b32 v{og}, 16, v{og}")
        a(f"v_mov_b32 v{og+1}, v{og}")
    X = ETMP + 8
    a("v_mul_u32_u24 v9, 1152, v12")
    a("v_lshl_add_u32 v9, v13, 3, v9")
    a("s_mul_i32 s54, s53, 1152")
    a(f"s_mul_i32 s52, s{sNS}, 192")
    a("s_add_u32 s54, s54, s52")
    a(f"s_lshr_b32 s52, s{sWV}, 1")
    a("s_mul_i32 s52, s52, 96")
    a("s_add_u32 s54, s54, s52")
    for sl in range(2):
        g = G + 2 * sl; og = G + 4 + 2 * sl
        if sl == 1:
            a(f"s_add_u32 s54, s54, {16*1152}")
        for ct in range(3):
            A0 = ACC + (sl * 3 + ct) * 4
            P0 = APK + (sl * 3 + ct) * 2
            for p in range(2):
                a(f"v_lshlrev_b32 v{X}, 16, v{P0+p}")
                a(f"v_and_b32 v{X+1}, 0xffff0000, v{P0+p}")
                a(f"v_cvt_pk_bf16_f32 v{X+4}, v{A0+2*p}, v{A0+2*p+1}")
                a(f"v_pk_mul_f32 {vr(X,2)}, {vr(X,2)}, {vr(g,2)}")
                a(f"v_lshlrev_b32 v{X+2}, 16, v{X+4}")
                a(f"v_and_b32 v{X+3}, 0xffff0000, v{X+4}")
                a(f"v_cvt_pk_bf16_f32 v{X+4}, v{X}, v{X+1}")
                a(f"v_pk_mul_f32 {vr(X+2,2)}, {vr(X+2,2)}, {vr(og,2)}")
                a(f"v_lshlrev_b32 v{X}, 16, v{X+4}")
                a(f"v_and_b32 v{X+1}, 0xffff0000, v{X+4}")
                a(f"v_cvt_pk_bf16_f32 v{X+4}, v{X+2}, v{X+3}")
                a(f"v_lshlrev_b32 v{X+2}, 16, v{X+4}")
                a(f"v_and_b32 v{X+3}, 0xffff0000, v{X+4}")
                a(f"v_pk_add_f32 {vr(X,2)}, {vr(X,2)}, {vr(X+2,2)}")
                a(f"v_cvt_pk_bf16_f32 v{A0+p}, v{X}, v{X+1}")
            a(f"buffer_store_dwordx2 {vr(A0,2)}, v9, s[{sOUT}:{sOUT+3}], s54 offen offset:{ct*32}")
    a.branch_nodrain("s_branch K2_END")
    a.label_nodrain("K2_IDLE_B")
    a.vmq = list(q0)
    a.barrier(lds=True)
    a.barrier(lds=True)
    a.label_nodrain("K2_END")
    if PROF:
        a.label("K2_ENDP")
        stamp(a, 30, PROF)
        a(f"s_lshl_b32 s98, s2, 3")
        a(f"s_add_u32 s98, s98, s{sWV}")
        a("s_lshl_b32 s98, s98, 8")
        a(f"s_add_u32 s98, s98, {WS_DBG + 0x100000}")
        a("v_lshlrev_b32 v2, 2, v1")
        a(f"buffer_store_dword v{PROF_V}, v2, s[{sWS}:{sWS+3}], s98 offen")
    a.label_nodrain("K2_EXIT")
    a("s_endpgm")
    return a
```
